```python
import torch

def _softmax(x, axis=-1):
    return torch.softmax(x, dim=axis)
def _gelu(x):
    return torch.nn.functional.gelu(x, approximate="tanh")
def _silu(x):
    return torch.nn.functional.silu(x)
def _sigmoid(x):
    return torch.sigmoid(x)
def _layernorm(x, axis=-1, eps=1e-5):
    m = x.mean(dim=axis, keepdim=True)
    v = x.var(dim=axis, keepdim=True, unbiased=False)
    return (x - m) / torch.sqrt(v + eps)
def _scatter_add(tgt, idx, src, axis=0):
    return tgt.clone().index_add_(axis, idx, src)
def _segment_sum(src, seg, n):
    out = torch.zeros((n,) + src.shape[1:], dtype=src.dtype)
    return out.index_add_(0, seg, src)
def _pad(x, pw):
    flat = tuple(v for pair in reversed(pw) for v in pair)
    return torch.nn.functional.pad(x, flat)

kernel_name = 'standalone__mha_softmax__near_ridge'

def setup_inputs():

    _w = (lambda a: (lambda t: t.to(torch.bfloat16) if t.is_floating_point() else t)(torch.as_tensor(a)))
    B, H, Sq, Sk, D = 8, 16, 512, 1024, 256
    return {
        "q": _w((lambda *s: torch.randn(*s, dtype=torch.bfloat16) * 0.8)(B, H, Sq, D)),
        "k": _w((lambda *s: torch.randn(*s, dtype=torch.bfloat16) * 0.8)(B, H, Sk, D)),
        "v": _w((lambda *s: torch.randn(*s, dtype=torch.bfloat16) * 0.05)(B, H, Sk, D)),
    }

def reference(q, k, v):
    scale = q.shape[-1] ** -0.5
    scores = torch.einsum("bhqd,bhkd->bhqk", q, k) * scale
    p = _softmax(scores, axis=-1)
    return torch.einsum("bhqk,bhkd->bhqd", p, v)
```

```python
import math, re, struct, sys

NAME = "standalone__mha_softmax__near_ridge"

def f32bits(x):
    return struct.unpack("<I", struct.pack("<f", x))[0]

class Opt:
    nbuf = 4
    dma_start = 39
    dma_step = 3
    debug_time = False
    no_dma = False
    no_softmax = False

opt = Opt()

C_SCALE = math.log2(math.e) / 16.0
THR = 8.0

S_QSRD, S_KSRD, S_VSRD, S_OSRD = 4, 8, 12, 16
S_W = 20; S_C = 21; S_KOFF = 22; S_VOFF = 23; S_CNT = 24; S_PEND = 25; S_16K = 26
S_M0K = 27; S_M0V = 28; S_INVC = 29; S_SITE = 30; S_FIRST = 31; S_THR = 32
S_TMP = 36
S_T0 = 48
V_OA = 0
V_SB = [128, 160]
V_FR = 192
V_KA = 216
V_VA = 224
V_KD = 228
V_VD = 232
V_NEGM = [234, 235]
V_MT = [236, 237]
V_L = [238, 239]
V_F = [240, 241]
V_T = [242, 243, 244, 245, 246, 247]
V_QO = 248
V_X = [249, 250, 251, 252, 253, 254, 255]
A_OB = 0
A_Q = 128

def vr(b, n): return f"v[{b}:{b+n-1}]"
def ar(b, n): return f"a[{b}:{b+n-1}]"
def sr(b, n): return f"s[{b}:{b+n-1}]"

REG_RE = re.compile(r"\b([va])\[(\d+):(\d+)\]|\b([va])(\d+)\b")
TRANS = ("v_exp_f32", "v_rcp_f32", "v_log_f32", "v_rsq_f32", "v_sqrt_f32")

def regs_of(tok):
    out = []
    for m in REG_RE.finditer(tok):
        if m.group(1):
            out += [(m.group(1), i) for i in range(int(m.group(2)), int(m.group(3)) + 1)]
        else:
            out.append((m.group(4), int(m.group(5))))
    return out

class Em:
    def __init__(self):
        self.lines = []
        self.pos = 0
        self.mfma_w = {}
        self.valu_w = {}
        self.trans_w = {}
        self.store_r = {}
        self.m0_w = -100
        self.lds_q = []
        self.n_instr = 0

    def raw(self, s):
        self.lines.append(s)

    def label(self, s):
        self.lines.append(s + ":")

    def nop(self, n):
        while n > 0:
            k = min(n, 16)
            self.lines.append(f"    s_nop {k-1}")
            self.pos += k
            n -= k
            self.n_instr += 1

    def need(self, p, dist):
        gap = self.pos - p - 1
        if gap < dist:
            self.nop(dist - gap)

    def __call__(self, s):
        op = s.split()[0]
        rest = s[len(op):]
        ops = [t.strip() for t in rest.split(",")]
        is_mfma = op.startswith("v_mfma")
        is_valu = op.startswith("v_") and not is_mfma
        is_ds = op.startswith("ds_")
        is_vmem = op.startswith("buffer_") or op.startswith("global_")
        allregs = regs_of(rest)
        if is_mfma:
            d = regs_of(ops[0]); a = regs_of(ops[1]); b = regs_of(ops[2]); c = regs_of(ops[3])
            for r in a + b + c:
                if r in self.valu_w: self.need(self.valu_w[r], 2)
            for r in a + b:
                if r in self.mfma_w: self.need(self.mfma_w[r], 12)
            if c and c != d:
                for r in c:
                    if r in self.mfma_w: self.need(self.mfma_w[r], 10)
            self.lines.append("    " + s)
            for r in d: self.mfma_w[r] = self.pos
            self.pos += 1; self.n_instr += 1
            return
        if is_valu or is_ds or is_vmem:
            for r in allregs:
                if r in self.mfma_w: self.need(self.mfma_w[r], 12)
        if is_valu:
            if op.startswith("v_cmp"):
                dst = []; src = allregs
            elif op.startswith("v_permlane"):
                dst = allregs; src = allregs
            elif op.startswith("v_readfirstlane") or op.startswith("v_readlane"):
                dst = []; src = allregs
            else:
                dst = regs_of(ops[0]); src = regs_of(",".join(ops[1:]))
                if op.startswith("v_fmac"): src = src + dst
            if op not in TRANS:
                for r in src:
                    if r in self.trans_w: self.need(self.trans_w[r], 1)
            if op.startswith("v_permlane"):
                for r in src:
                    if r in self.valu_w: self.need(self.valu_w[r], 2)
            if op.startswith("v_readfirstlane") or op.startswith("v_readlane"):
                for r in src:
                    if r in self.valu_w: self.need(self.valu_w[r], 1)
            for r in dst:
                if r in self.store_r: self.need(self.store_r[r], 2)
            self.lines.append("    " + s)
            for r in dst:
                self.valu_w[r] = self.pos
                if op in TRANS: self.trans_w[r] = self.pos
                else: self.trans_w.pop(r, None)
            self.pos += 1; self.n_instr += 1
            return
        if is_vmem and s.rstrip().endswith("lds"):
            self.need(self.m0_w, 1)
        if is_vmem and "store" in op:
            for r in regs_of(ops[0]): self.store_r[r] = self.pos
        if op.startswith("s_") and ops[0] == "m0":
            self.m0_w = self.pos
        self.lines.append("    " + s)
        self.pos += 1; self.n_instr += 1

    def ds(self, s, tag):
        self(s)
        self.lds_q.append(tag)

    def wait_lds(self, tag):
        idx = [i for i, t in enumerate(self.lds_q) if t == tag]
        if not idx:
            return
        n_after = len(self.lds_q) - 1 - idx[-1]
        assert n_after <= 15
        self(f"s_waitcnt lgkmcnt({n_after})")
        self.lds_q = self.lds_q[idx[-1] + 1:]

    def wait_lds_all(self, extra=""):
        self(f"s_waitcnt lgkmcnt(0){extra}")
        self.lds_q = []

e = Em()
rare_sites = {"R1A": [], "R1B": [], "R2": []}
site_counter = [0]

def new_site(kind):
    k = site_counter[0]; site_counter[0] += 1
    rare_sites[kind].append(k)
    return k

def kfrag_read(buf, slot, f, tag):
    ksp, u = f & 7, f >> 3
    off = slot * 16384 + u * 256
    return [(f"ds_read_b128 {vr(V_FR + 4*buf, 4)}, v{V_KA + ksp} offset:{off}", tag)]

def vfrag_read(buf, slot, b, kk, tag):
    bp, u = b & 3, b >> 2
    out = []
    for i in range(2):
        off = slot * 16384 + kk * 8192 + i * 4096 + u * 256
        out.append((f"ds_read_b64_tr_b16 {vr(V_FR + 4*buf + 2*i, 2)}, v{V_VA + bp} offset:{off}", tag))
    return out

def qk_mfma(buf, f, X, sb):
    s = vr(V_SB[sb] + 16 * X, 16)
    q = ar(A_Q + 64 * X + 4 * f, 4)
    c = "0" if f == 0 else s
    return f"v_mfma_f32_32x32x16_bf16 {s}, {vr(V_FR + 4*buf, 4)}, {q}, {c}"

def pv_mfma(buf, b, kk, X, sb):
    o = vr(V_OA + 16 * b, 16) if X == 0 else ar(A_OB + 16 * b, 16)
    p = vr(V_SB[sb] + 16 * X + 4 * kk, 4)
    return f"v_mfma_f32_32x32x16_bf16 {o}, {vr(V_FR + 4*buf, 4)}, {p}, {o}"

def softmax_ops(X, sb):
    s = [V_SB[sb] + 16 * X + i for i in range(16)]
    t0, t1 = V_T[2 * X], V_T[2 * X + 1]
    ops = []
    A = lambda txt, c=1: ops.append((c, txt))
    A(f"v_max3_f32 v{t0}, v{s[0]}, v{s[1]}, v{s[2]}")
    A(f"v_max3_f32 v{t1}, v{s[3]}, v{s[4]}, v{s[5]}")
    A(f"v_max3_f32 v{t0}, v{t0}, v{s[6]}, v{s[7]}")
    A(f"v_max3_f32 v{t1}, v{t1}, v{s[8]}, v{s[9]}")
    A(f"v_max3_f32 v{t0}, v{t0}, v{s[10]}, v{s[11]}")
    A(f"v_max3_f32 v{t1}, v{t1}, v{s[12]}, v{s[13]}")
    A(f"v_max3_f32 v{t0}, v{t0}, v{s[14]}, v{s[15]}")
    A(f"v_max_f32 v{t0}, v{t0}, v{t1}")
    kind = "R1A" if X == 0 else "R1B"
    def chk():
        k = new_site(kind)
        e(f"v_cmp_gt_f32 vcc, v{t0}, v{V_MT[X]}")
        e(f"s_cbranch_vccnz L_stub_{k}")
        e.label(f"L_back_{k}")
    ops.append((2, chk))
    F = lambda i: A(f"v_fma_f32 v{s[i]}, v{s[i]}, s{S_C}, v{V_NEGM[X]}")
    E = lambda i: A(f"v_exp_f32 v{s[i]}, v{s[i]}", 2)
    AD = lambda i: A(f"v_add_f32 v{V_L[X]}, v{V_L[X]}, v{s[i]}")
    CV = lambda k: A(f"v_cvt_pk_bf16_f32 v{s[k]}, v{s[2*k]}, v{s[2*k+1]}")
    F(0); F(1); E(0)
    for i in range(1, 16):
        if i + 1 < 16: F(i + 1)
        E(i)
        AD(i - 1)
        if i % 2 == 0: CV(i // 2 - 1)
    AD(15)
    CV(7)
    return ops

def dma_group(kslot, vslot, do_k=True, do_v=True):
    items = []
    if do_k:
        def k0():
            e(f"s_add_u32 m0, s{S_M0K}, {kslot*16384}")
        for t in range(4):
            def kd(t=t):
                if t == 0: e(f"s_add_u32 m0, s{S_M0K}, {kslot*16384}")
                e(f"buffer_load_dwordx4 v{V_KD + t}, {sr(S_KSRD,4)}, s{S_KOFF} offen offset:{t*1024} lds")
                if t == 3: e(f"s_add_u32 s{S_KOFF}, s{S_KOFF}, 16384")
            items.append(kd)
    if do_v:
        for t in range(4):
            def vd(t=t):
                if t == 0: e(f"s_add_u32 m0, s{S_M0V}, {vslot*16384}")
                e(f"buffer_load_dwordx4 v{V_VD + (t & 1)}, {sr(S_VSRD,4)}, s{S_VOFF} offen offset:{t*1024} lds")
                if t == 3: e(f"s_add_u32 s{S_VOFF}, s{S_VOFF}, 16384")
            items.append(vd)
    return items

def spread(ops, g0, g1, gaps):
    tot = sum(c for c, _ in ops)
    n = g1 - g0 + 1
    acc = 0.0
    for c, it in ops:
        g = g0 + min(n - 1, int((acc + 0.5 * c) * n / tot))
        gaps[g].append(it)
        acc += c

def run_item(it):
    if callable(it): it()
    elif isinstance(it, tuple): e.ds(it[0], it[1])
    else: e(it)

def body(j, has_T=True, has_PV=True, has_P1=True, dma_k=True, dma_v=True, vm_end=16,
         end_barrier=True, sm_next=True, pre_frags=3, T_frags=(13, 14, 15), next_pre=True, frag0=0,
         tail_hook=None):
    nb = opt.nbuf
    sb_next = (j + 1) & 1
    sb_cur = j & 1
    frs = []
    if has_T:
        for f in T_frags: frs.append(("K1", f))
    if has_PV:
        for b in range(8):
            for kk in range(2): frs.append(("V", b, kk))
    if has_P1:
        for f in range(13): frs.append(("K2", f))
    ncons = len(frs)
    if has_P1 and next_pre:
        for f in (13, 14, 15): frs.append(("K2", f))
    npre = len(T_frags) if has_T else 0
    mf = []
    for n in range(ncons):
        fr = frs[n]; buf = (frag0 + n) % nb
        for X in range(2):
            if fr[0] == "K1": mf.append((n, qk_mfma(buf, fr[1], X, sb_next)))
            elif fr[0] == "V": mf.append((n, pv_mfma(buf, fr[1], fr[2], X, sb_cur)))
            else: mf.append((n, qk_mfma(buf, fr[1], X, sb_cur)))
    nm = len(mf)
    gaps = {g: [] for g in range(-1, nm)}
    for n in range(npre, len(frs)):
        fr = frs[n]; buf = (frag0 + n) % nb
        g = 2 * (n - nb) + 1
        if g < -1: g = -1
        if fr[0] == "V":
            rd = vfrag_read(buf, j & 3, fr[1], fr[2], ("f", j, n))
        else:
            rd = kfrag_read(buf, (j + 2) & 3, fr[1], ("f", j, n))
        gaps[g] += rd
    pv0 = 2 * npre
    pv1 = pv0 + (32 if has_PV else 0)
    if sm_next and not opt.no_softmax:
        if has_PV and has_P1:
            spread(softmax_ops(0, sb_next), pv0 + 2, pv1 - 1, gaps)
            spread(softmax_ops(1, sb_next), pv1, nm - 2, gaps)
        else:
            lo = pv0 + 2
            spread(softmax_ops(0, sb_next) + softmax_ops(1, sb_next), lo, nm - 2, gaps)
    if (dma_k or dma_v) and not opt.no_dma:
        items = dma_group((j + 5) & 3, (j + 3) & 3, dma_k, dma_v)
        g = opt.dma_start if has_PV else 1
        for it in items:
            gaps[min(g, nm - 1)].append(it)
            g += opt.dma_step
    for it in gaps[-1]: run_item(it)
    for m, (n, txt) in enumerate(mf):
        if has_PV and m == pv0:
            k = new_site("R2")
            e(f"s_cmp_lg_u32 s{S_PEND}, 0")
            e(f"s_cbranch_scc1 L_stub_{k}")
            e.label(f"L_back_{k}")
        if m % 2 == 0:
            e.wait_lds(("f", j, n))
        e(txt)
        for it in gaps[m]: run_item(it)
    if end_barrier:
        e.wait_lds_all()
        e(f"s_waitcnt vmcnt({vm_end})")
        e("s_barrier")
    return (frag0 + ncons) % nb

def gen():
    hdr = open("cdna_kernels/" + NAME + ".s.ref").read().split("\n")
    head = []
    for ln in hdr:
        if ln.startswith("; @launch"):
            break
        head.append(ln)
    out = head + ["; @launch grid=(256,1,1) block=(256,1,1) lds=131072",
                  '.amdgcn_target "amdgcn-amd-amdhsa--gfx950"', ".text",
                  f".globl {NAME}_kernel", ".p2align 8", f".type {NAME}_kernel,@function",
                  f"{NAME}_kernel:"]
    T = S_TMP
    e("s_cmp_ge_u32 s2, 256")
    e("s_cbranch_scc1 L_end")
    e(f"s_load_dwordx4 {sr(T,4)}, s[0:1], 0")
    e(f"s_load_dwordx4 {sr(T+4,4)}, s[0:1], 16")
    if opt.debug_time:
        e(f"s_load_dwordx2 s[64:65], s[0:1], 40")
        e(f"s_memtime s[{S_T0}:{S_T0+1}]")
    e(f"s_and_b32 s{T+8}, s2, 7")
    e(f"s_lshr_b32 s{T+9}, s2, 4")
    e(f"s_lshl_b32 s{T+9}, s{T+9}, 3")
    e(f"s_add_u32 s{T+9}, s{T+9}, s{T+8}")
    e(f"s_bfe_u32 s{T+10}, s2, 0x10003")
    vL, vq, vh, vx, vy, vz = V_X[0], V_X[1], V_X[2], V_X[3], V_X[4], V_X[5]
    e(f"v_lshrrev_b32 v{vx}, 6, v0")
    e(f"v_and_b32 v{vL}, 63, v0")
    e(f"v_readfirstlane_b32 s{S_W}, v{vx}")
    e(f"v_and_b32 v{vq}, 31, v{vL}")
    e(f"v_lshrrev_b32 v{vh}, 5, v{vL}")
    e(f"s_lshl_b32 s{T+11}, s{T+9}, 1")
    e(f"s_add_u32 s{T+11}, s{T+11}, s{T+10}")
    e(f"s_lshl_b32 s{T+11}, s{T+11}, 17")
    e(f"s_lshl_b32 s{T+9}, s{T+9}, 19")
    e(f"s_mov_b32 s{S_C}, 0x{f32bits(C_SCALE):08x}")
    e(f"s_mov_b32 s{S_INVC}, 0x{f32bits(1.0 / C_SCALE):08x}")
    e(f"s_mov_b32 s{S_THR}, 0x{f32bits(THR):08x}")
    e(f"s_mov_b32 s{S_16K}, 16384")
    e(f"s_mov_b32 s{S_PEND}, 0")
    e(f"s_mov_b32 s{S_FIRST}, 0")
    e(f"s_mov_b32 s{S_KOFF}, 0")
    e(f"s_mov_b32 s{S_VOFF}, 0")
    e(f"s_lshl_b32 s{S_M0K}, s{S_W}, 12")
    e(f"s_add_u32 s{S_M0V}, s{S_M0K}, 65536")
    e("s_waitcnt lgkmcnt(0)")
    for srd, ptr, off, nrec in ((S_QSRD, T, T + 11, 131072), (S_KSRD, T + 2, T + 9, 524288),
                                (S_VSRD, T + 4, T + 9, 524288), (S_OSRD, T + 6, T + 11, 131072)):
        e(f"s_add_u32 s{srd}, s{ptr}, s{off}")
        e(f"s_addc_u32 s{srd+1}, s{ptr+1}, 0")
        e(f"s_and_b32 s{srd+1}, s{srd+1}, 0xffff")
        e(f"s_mov_b32 s{srd+2}, {nrec}")
        e(f"s_mov_b32 s{srd+3}, 0x00020000")
    e(f"v_lshlrev_b32 v{vy}, 9, v{vh}")
    e(f"v_add_u32 v{vy}, s{S_M0K}, v{vy}")
    e(f"s_and_b32 s{T+8}, s{S_W}, 1")
    e(f"s_lshl_b32 s{T+8}, s{T+8}, 3")
    e(f"v_add_u32 v{vz}, s{T+8}, v{vh}")
    for t in range(4):
        e(f"v_add_u32 v{vx}, {2*t}, v{vz}")
        e(f"v_xor_b32 v{vx}, v{vx}, v{vq}")
        e(f"v_lshl_add_u32 v{V_KD+t}, v{vx}, 4, v{vy}")
    def kdma(slot):
        e(f"s_add_u32 m0, s{S_M0K}, {slot*16384}")
        for t in range(4):
            e(f"buffer_load_dwordx4 v{V_KD + t}, {sr(S_KSRD,4)}, s{S_KOFF} offen offset:{t*1024} lds")
        e(f"s_add_u32 s{S_KOFF}, s{S_KOFF}, 16384")
    def vdma(slot):
        e(f"s_add_u32 m0, s{S_M0V}, {slot*16384}")
        for t in range(4):
            e(f"buffer_load_dwordx4 v{V_VD + (t&1)}, {sr(S_VSRD,4)}, s{S_VOFF} offen offset:{t*1024} lds")
        e(f"s_add_u32 s{S_VOFF}, s{S_VOFF}, 16384")
    kdma(0)
    e(f"s_lshl_b32 s{T+8}, s{S_W}, 15")
    e(f"v_lshlrev_b32 v{vx}, 9, v{vq}")
    e(f"v_lshl_add_u32 v{vx}, v{vh}, 4, v{vx}")
    e(f"v_add_u32 v{V_QO}, s{T+8}, v{vx}")
    for ks in range(16):
        for X in range(2):
            so = "0" if X == 0 else f"s{S_16K}"
            e(f"buffer_load_dwordx4 {ar(A_Q + 64*X + 4*ks, 4)}, v{V_QO}, {sr(S_QSRD,4)}, {so} offen offset:{ks*32}")
    for par in range(2):
        e(f"v_add_u32 v{vx}, {2*par}, v{vh}")
        e(f"v_lshlrev_b32 v{vx}, 2, v{vx}")
        e(f"v_xor_b32 v{vx}, v{vx}, v{vq}")
        e(f"v_lshl_add_u32 v{V_VD+par}, v{vx}, 4, v{vy}")
    kdma(1)
    kdma(2); vdma(0)
    kdma(3); vdma(1)
    e(f"v_and_b32 v{vz}, 15, v{vq}")
    e(f"v_lshlrev_b32 v{vy}, 9, v{vq}")
    for ksp in range(8):
        e(f"v_add_u32 v{vx}, {2*ksp}, v{vh}")
        e(f"v_xor_b32 v{vx}, v{vx}, v{vz}")
        e(f"v_lshl_add_u32 v{V_KA+ksp}, v{vx}, 4, v{vy}")
    e(f"v_bfe_u32 v{vz}, v{vL}, 2, 2")
    e(f"v_lshl_add_u32 v{vy}, v{vh}, 2, v{vz}")
    e(f"v_lshlrev_b32 v{vy}, 9, v{vy}")
    e(f"v_add_u32 v{vy}, 0x10000, v{vy}")
    e(f"v_bfe_u32 v{vx}, v{vL}, 4, 1")
    e(f"v_lshl_add_u32 v{vy}, v{vx}, 5, v{vy}")
    e(f"v_and_b32 v{vx}, 3, v{vL}")
    e(f"v_lshl_add_u32 v{vy}, v{vx}, 3, v{vy}")
    for bp in range(4):
        e(f"v_xor_b32 v{vx}, {bp}, v{vz}")
        e(f"v_lshl_add_u32 v{V_VA+bp}, v{vx}, 6, v{vy}")
    for X in range(2):
        e(f"v_mov_b32 v{V_NEGM[X]}, 0x7f800000")
        e(f"v_mov_b32 v{V_MT[X]}, 0xff800000")
        e(f"v_mov_b32 v{V_L[X]}, 0")
        e(f"v_mov_b32 v{V_F[X]}, 1.0")
    for i in range(128):
        e(f"v_mov_b32 v{V_OA+i}, 0")
    for i in range(128):
        e(f"v_accvgpr_write_b32 a{A_OB+i}, 0")
    e("s_waitcnt vmcnt(52)")
    e("s_barrier")
    nb = opt.nbuf
    for n in range(min(nb, 16)):
        for s_, tg in kfrag_read(n % nb, 0, n, ("p", n)): e.ds(s_, tg)
    for f in range(13):
        e.wait_lds(("p", f))
        for X in range(2):
            e(f"s_waitcnt vmcnt({20 + 31 - (2*f + X)})")
            e(qk_mfma(f % nb, f, X, 0))
        n = f + nb
        if n < 16:
            for s_, tg in kfrag_read(n % nb, 0, n, ("p", n)): e.ds(s_, tg)
    e.wait_lds_all()
    e("s_waitcnt vmcnt(16)")
    e("s_barrier")
    fr0 = 13 % nb
    fr0 = body(-1, has_PV=False, frag0=fr0)
    e(f"s_mov_b32 s{S_FIRST}, 1")
    e(f"s_mov_b32 s{S_PEND}, 0")
    for X in range(2):
        e(f"v_mov_b32 v{V_F[X]}, 1.0")
    e(f"s_mov_b32 s{S_CNT}, 7")
    if opt.debug_time:
        e(f"s_memtime s[{S_T0+2}:{S_T0+3}]")
        e("s_waitcnt lgkmcnt(0)")
    e.raw(".p2align 6")
    e.label("L_loop")
    f_in = fr0
    for j in range(4):
        fr0 = body(j, frag0=fr0)
    assert fr0 == f_in
    e(f"s_sub_u32 s{S_CNT}, s{S_CNT}, 1")
    e(f"s_cmp_lg_u32 s{S_CNT}, 0")
    e("s_cbranch_scc1 L_loop")
    if opt.debug_time:
        e(f"s_memtime s[{S_T0+4}:{S_T0+5}]")
        e("s_waitcnt lgkmcnt(0)")
    fr0 = body(28, dma_k=False, dma_v=True, vm_end=12, frag0=fr0)
    fr0 = body(29, dma_k=False, dma_v=False, vm_end=0, frag0=fr0)
    fr0 = body(30, has_P1=False, dma_k=False, dma_v=False, end_barrier=False, frag0=fr0)
    fr0 = body(31, has_T=False, has_P1=False, dma_k=False, dma_v=False, end_barrier=False,
               sm_next=False, frag0=fr0)
    if opt.debug_time:
        e(f"s_memtime s[{S_T0+6}:{S_T0+7}]")
        e("s_waitcnt lgkmcnt(0)")
    for X in range(2):
        a_, b_ = V_T[0], V_T[1]
        e(f"v_mov_b32 v{a_}, v{V_L[X]}")
        e(f"v_mov_b32 v{b_}, v{V_L[X]}")
        e(f"v_permlane32_swap_b32 v{a_}, v{b_}")
        e(f"v_add_f32 v{a_}, v{a_}, v{b_}")
        e(f"v_rcp_f32 v{V_L[X]}, v{a_}")
    tmpbase = [128, 144, 160, 176]
    cnt = 0
    for X in range(2):
        for b in range(8):
            tb = tmpbase[cnt % 4]; cnt += 1
            if X == 0:
                src = [V_OA + 16 * b + i for i in range(16)]
                for i in range(16):
                    e(f"v_mul_f32 v{tb+i}, v{src[i]}, v{V_L[X]}")
            else:
                for i in range(16):
                    e(f"v_accvgpr_read_b32 v{tb+i}, a{A_OB + 16*b + i}")
                for i in range(16):
                    e(f"v_mul_f32 v{tb+i}, v{tb+i}, v{V_L[X]}")
            for k in range(8):
                e(f"v_cvt_pk_bf16_f32 v{tb+k}, v{tb+2*k}, v{tb+2*k+1}")
            for g in (0, 2):
                e(f"v_permlane32_swap_b32 v{tb+2*g}, v{tb+2*g+2}")
                e(f"v_permlane32_swap_b32 v{tb+2*g+1}, v{tb+2*g+3}")
            so = "0" if X == 0 else f"s{S_16K}"
            for g in (0, 2):
                e(f"buffer_store_dwordx4 {vr(tb+2*g, 4)}, v{V_QO}, {sr(S_OSRD,4)}, {so} offen offset:{64*b + 16*g}")
    if opt.debug_time:
        e(f"s_memtime s[{S_T0+8}:{S_T0+9}]")
        e("s_waitcnt vmcnt(0) lgkmcnt(0)")
        e(f"s_memtime s[{S_T0+10}:{S_T0+11}]")
        e("s_waitcnt lgkmcnt(0)")
        e(f"s_lshl_b32 s66, s2, 2")
        e(f"s_add_u32 s66, s66, s{S_W}")
        e(f"s_lshl_b32 s66, s66, 6")
        e("s_mov_b32 s68, s64")
        e("s_and_b32 s69, s65, 0xffff")
        e("s_mov_b32 s70, 65536")
        e("s_mov_b32 s71, 0x00020000")
        e("v_mov_b32 v0, 0")
        for i in range(6):
            e(f"v_mov_b32 v1, s{S_T0+2*i}")
            e(f"buffer_store_dword v1, v0, s[68:71], s66 offen offset:{4*i}")
    e.label("L_end")
    e("s_endpgm")
    for kind in ("R1A", "R1B", "R2"):
        for k in rare_sites[kind]:
            e.label(f"L_stub_{k}")
            e(f"s_mov_b32 s{S_SITE}, {k}")
            e(f"s_branch L_{kind}")
    def ret(kind):
        for k in rare_sites[kind]:
            e(f"s_cmp_eq_u32 s{S_SITE}, {k}")
            e(f"s_cbranch_scc1 L_back_{k}")
        e("s_endpgm")
    for X, kind in ((0, "R1A"), (1, "R1B")):
        e.label(f"L_{kind}")
        t0 = V_T[2 * X]; a_, b_ = V_T[4], V_T[5]
        e.nop(2)
        e(f"v_mov_b32 v{a_}, v{t0}")
        e(f"v_mov_b32 v{b_}, v{t0}")
        e(f"v_permlane32_swap_b32 v{a_}, v{b_}")
        e(f"v_max_f32 v{a_}, v{a_}, v{b_}")
        e(f"v_mul_f32 v{a_}, s{S_C}, v{a_}")
        e(f"v_sub_f32 v{a_}, 0, v{a_}")
        e(f"v_min_f32 v{a_}, v{a_}, v{V_NEGM[X]}")
        e(f"v_sub_f32 v{b_}, v{a_}, v{V_NEGM[X]}")
        e(f"v_exp_f32 v{b_}, v{b_}")
        e(f"v_mov_b32 v{V_NEGM[X]}, v{a_}")
        e(f"v_sub_f32 v{a_}, s{S_THR}, v{a_}")
        e(f"v_mul_f32 v{V_MT[X]}, s{S_INVC}, v{a_}")
        e(f"v_mul_f32 v{V_L[X]}, v{V_L[X]}, v{b_}")
        e(f"v_mov_b32 v{V_F[X]}, v{b_}")
        e(f"s_mov_b32 s{S_PEND}, 1")
        e.nop(2)
        ret(kind)
    e.label("L_R2")
    e.nop(16)
    for i in range(128):
        e(f"v_mul_f32 v{V_OA+i}, v{V_OA+i}, v{V_F[0]}")
    for i in range(0, 128, 2):
        a_, b_ = V_T[4], V_T[5]
        e(f"v_accvgpr_read_b32 v{a_}, a{A_OB+i}")
        e(f"v_accvgpr_read_b32 v{b_}, a{A_OB+i+1}")
        e(f"v_mul_f32 v{a_}, v{a_}, v{V_F[1]}")
        e(f"v_mul_f32 v{b_}, v{b_}, v{V_F[1]}")
        e(f"v_accvgpr_write_b32 a{A_OB+i}, v{a_}")
        e(f"v_accvgpr_write_b32 a{A_OB+i+1}, v{b_}")
    e(f"v_mov_b32 v{V_F[0]}, 1.0")
    e(f"v_mov_b32 v{V_F[1]}, 1.0")
    e(f"s_mov_b32 s{S_PEND}, 0")
    e.nop(2)
    ret("R2")
    out += e.lines
    out += ['.section .rodata,"a"', ".p2align 6", f".amdhsa_kernel {NAME}_kernel",
            "  .amdhsa_next_free_vgpr 512", "  .amdhsa_next_free_sgpr 96", "  .amdhsa_accum_offset 256",
            "  .amdhsa_group_segment_fixed_size 0", "  .amdhsa_kernarg_size 48",
            "  .amdhsa_user_sgpr_count 2", "  .amdhsa_user_sgpr_kernarg_segment_ptr 1",
            "  .amdhsa_system_sgpr_workgroup_id_x 1", ".end_amdhsa_kernel", ""]
    return "\n".join(out)

if __name__ == "__main__":
    outp = "cdna_kernels/" + NAME + ".s"
    for a in sys.argv[1:]:
        if a.startswith("-o="): outp = a[3:]
        else:
            k, v = a.split("=")
            setattr(opt, k, type(getattr(opt, k))(int(v)) if not isinstance(getattr(opt, k), bool) else bool(int(v)))
    txt = gen()
    open(outp, "w").write(txt)
    print("wrote", outp, "instrs", e.n_instr)
```

```python
import math, re, struct, sys

NAME = "standalone__mha_softmax__near_ridge"

def f32bits(x):
    return struct.unpack("<I", struct.pack("<f", x))[0]

class Opt:
    nbuf = 4
    dma_start = 0
    dma_step = 1
    debug_time = False
    no_dma = False
    no_softmax = False
    kv_nt = True
    q_nt = True
    o_nt = False
    pre_dma_f = 0
    pair_order = False
    w1 = 63
    w2 = 63
    w3 = 63

opt = Opt()
def KVAUX(): return ' nt' if opt.kv_nt else ''
def QAUX(): return ' nt' if opt.q_nt else ''
def OAUX(): return ' nt' if opt.o_nt else ''

C_SCALE = math.log2(math.e) / 16.0
THR = 8.0

S_QSRD, S_KSRD, S_VSRD, S_OSRD = 4, 8, 12, 16
S_W = 20; S_C = 21; S_KOFF = 22; S_VOFF = 23; S_CNT = 24; S_PEND = 25; S_16K = 26
S_M0K = 27; S_M0V = 28; S_INVC = 29; S_SITE = 30; S_FIRST = 31; S_THR = 32
S_TMP = 36
S_T0 = 48
V_OA = 0
V_SB = [128, 160]
V_FR = 192
V_KA = 216
V_VA = 224
V_KD = 228
V_VD = 232
V_NEGM = [234, 235]
V_MT = [236, 237]
V_L = [238, 239]
V_F = [240, 241]
V_T = [242, 243, 244, 245, 246, 247]
V_QO = 248
V_X = [249, 250, 251, 252, 253, 254, 255]
A_OB = 0
A_Q = 128

def vr(b, n): return f"v[{b}:{b+n-1}]"
def ar(b, n): return f"a[{b}:{b+n-1}]"
def sr(b, n): return f"s[{b}:{b+n-1}]"

REG_RE = re.compile(r"\b([va])\[(\d+):(\d+)\]|\b([va])(\d+)\b")
TRANS = ("v_exp_f32", "v_rcp_f32", "v_log_f32", "v_rsq_f32", "v_sqrt_f32")

def regs_of(tok):
    out = []
    for m in REG_RE.finditer(tok):
        if m.group(1):
            out += [(m.group(1), i) for i in range(int(m.group(2)), int(m.group(3)) + 1)]
        else:
            out.append((m.group(4), int(m.group(5))))
    return out

class Em:
    def __init__(self):
        self.lines = []
        self.pos = 0
        self.mfma_w = {}
        self.valu_w = {}
        self.trans_w = {}
        self.store_r = {}
        self.m0_w = -100
        self.lds_q = []
        self.n_instr = 0

    def raw(self, s):
        self.lines.append(s)

    def label(self, s):
        self.lines.append(s + ":")

    def nop(self, n):
        while n > 0:
            k = min(n, 16)
            self.lines.append(f"    s_nop {k-1}")
            self.pos += k
            n -= k
            self.n_instr += 1

    def need(self, p, dist):
        gap = self.pos - p - 1
        if gap < dist:
            self.nop(dist - gap)

    def __call__(self, s):
        op = s.split()[0]
        rest = s[len(op):]
        ops = [t.strip() for t in rest.split(",")]
        is_mfma = op.startswith("v_mfma")
        is_valu = op.startswith("v_") and not is_mfma
        is_ds = op.startswith("ds_")
        is_vmem = op.startswith("buffer_") or op.startswith("global_")
        allregs = regs_of(rest)
        if is_mfma:
            d = regs_of(ops[0]); a = regs_of(ops[1]); b = regs_of(ops[2]); c = regs_of(ops[3])
            for r in a + b + c:
                if r in self.valu_w: self.need(self.valu_w[r], 2)
            for r in a + b:
                if r in self.mfma_w: self.need(self.mfma_w[r], 12)
            if c and c != d:
                for r in c:
                    if r in self.mfma_w: self.need(self.mfma_w[r], 10)
            self.lines.append("    " + s)
            for r in d: self.mfma_w[r] = self.pos
            self.pos += 1; self.n_instr += 1
            return
        if is_valu or is_ds or is_vmem:
            for r in allregs:
                if r in self.mfma_w: self.need(self.mfma_w[r], 12)
        if is_valu:
            if op.startswith("v_cmp"):
                dst = []; src = allregs
            elif op.startswith("v_permlane"):
                dst = allregs; src = allregs
            elif op.startswith("v_readfirstlane") or op.startswith("v_readlane"):
                dst = []; src = allregs
            else:
                dst = regs_of(ops[0]); src = regs_of(",".join(ops[1:]))
                if op.startswith("v_fmac"): src = src + dst
            if op not in TRANS:
                for r in src:
                    if r in self.trans_w: self.need(self.trans_w[r], 1)
            if op.startswith("v_permlane"):
                for r in src:
                    if r in self.valu_w: self.need(self.valu_w[r], 2)
            if op.startswith("v_readfirstlane") or op.startswith("v_readlane"):
                for r in src:
                    if r in self.valu_w: self.need(self.valu_w[r], 1)
            for r in dst:
                if r in self.store_r: self.need(self.store_r[r], 2)
            self.lines.append("    " + s)
            for r in dst:
                self.valu_w[r] = self.pos
                if op in TRANS: self.trans_w[r] = self.pos
                else: self.trans_w.pop(r, None)
            self.pos += 1; self.n_instr += 1
            return
        if is_vmem and s.rstrip().endswith("lds"):
            self.need(self.m0_w, 1)
        if is_vmem and "store" in op:
            for r in regs_of(ops[0]): self.store_r[r] = self.pos
        if op.startswith("s_") and ops[0] == "m0":
            self.m0_w = self.pos
        self.lines.append("    " + s)
        self.pos += 1; self.n_instr += 1

    def ds(self, s, tag):
        self(s)
        self.lds_q.append(tag)

    def wait_lds(self, tag):
        idx = [i for i, t in enumerate(self.lds_q) if t == tag]
        if not idx:
            return
        n_after = len(self.lds_q) - 1 - idx[-1]
        assert n_after <= 15
        self(f"s_waitcnt lgkmcnt({n_after})")
        self.lds_q = self.lds_q[idx[-1] + 1:]

    def wait_lds_all(self, extra=""):
        self(f"s_waitcnt lgkmcnt(0){extra}")
        self.lds_q = []

e = Em()
rare_sites = {"R1A": [], "R1B": [], "R2": []}
site_counter = [0]

def new_site(kind):
    k = site_counter[0]; site_counter[0] += 1
    rare_sites[kind].append(k)
    return k

def kfrag_read(buf, slot, f, tag):
    ksp, u = f & 7, f >> 3
    off = slot * 16384 + u * 256
    return [(f"ds_read_b128 {vr(V_FR + 4*buf, 4)}, v{V_KA + ksp} offset:{off}", tag)]

def vfrag_read(buf, slot, b, kk, tag):
    bp, u = b & 3, b >> 2
    out = []
    for i in range(2):
        off = slot * 16384 + kk * 8192 + i * 4096 + u * 256
        out.append((f"ds_read_b64_tr_b16 {vr(V_FR + 4*buf + 2*i, 2)}, v{V_VA + bp} offset:{off}", tag))
    return out

def qk_mfma(buf, f, X, sb):
    s = vr(V_SB[sb] + 16 * X, 16)
    q = ar(A_Q + 64 * X + 4 * f, 4)
    c = "0" if f == 0 else s
    return f"v_mfma_f32_32x32x16_bf16 {s}, {vr(V_FR + 4*buf, 4)}, {q}, {c}"

def pv_mfma(buf, b, kk, X, sb):
    o = vr(V_OA + 16 * b, 16) if X == 0 else ar(A_OB + 16 * b, 16)
    p = vr(V_SB[sb] + 16 * X + 4 * kk, 4)
    return f"v_mfma_f32_32x32x16_bf16 {o}, {vr(V_FR + 4*buf, 4)}, {p}, {o}"

def softmax_ops(X, sb):
    s = [V_SB[sb] + 16 * X + i for i in range(16)]
    t0, t1 = V_T[2 * X], V_T[2 * X + 1]
    ops = []
    A = lambda txt, c=1: ops.append((c, txt))
    A(f"v_max3_f32 v{t0}, v{s[0]}, v{s[1]}, v{s[2]}")
    A(f"v_max3_f32 v{t1}, v{s[3]}, v{s[4]}, v{s[5]}")
    A(f"v_max3_f32 v{t0}, v{t0}, v{s[6]}, v{s[7]}")
    A(f"v_max3_f32 v{t1}, v{t1}, v{s[8]}, v{s[9]}")
    A(f"v_max3_f32 v{t0}, v{t0}, v{s[10]}, v{s[11]}")
    A(f"v_max3_f32 v{t1}, v{t1}, v{s[12]}, v{s[13]}")
    A(f"v_max3_f32 v{t0}, v{t0}, v{s[14]}, v{s[15]}")
    A(f"v_max_f32 v{t0}, v{t0}, v{t1}")
    kind = "R1A" if X == 0 else "R1B"
    def chk():
        k = new_site(kind)
        e(f"v_cmp_gt_f32 vcc, v{t0}, v{V_MT[X]}")
        e(f"s_cbranch_vccnz L_stub_{k}")
        e.label(f"L_back_{k}")
    ops.append((2, chk))
    F = lambda i: A(f"v_fma_f32 v{s[i]}, v{s[i]}, s{S_C}, v{V_NEGM[X]}")
    E = lambda i: A(f"v_exp_f32 v{s[i]}, v{s[i]}", 2)
    AD = lambda i: A(f"v_add_f32 v{V_L[X]}, v{V_L[X]}, v{s[i]}")
    CV = lambda k: A(f"v_cvt_pk_bf16_f32 v{s[k]}, v{s[2*k]}, v{s[2*k+1]}")
    F(0); F(1); E(0)
    for i in range(1, 16):
        if i + 1 < 16: F(i + 1)
        E(i)
        AD(i - 1)
        if i % 2 == 0: CV(i // 2 - 1)
    AD(15)
    CV(7)
    return ops

def dma_group(kslot, vslot, do_k=True, do_v=True):
    items = []
    if do_k:
        def k0():
            e(f"s_add_u32 m0, s{S_M0K}, {kslot*16384}")
        for t in range(4):
            def kd(t=t):
                if t == 0: e(f"s_add_u32 m0, s{S_M0K}, {kslot*16384}")
                e(f"buffer_load_dwordx4 v{V_KD + t}, {sr(S_KSRD,4)}, s{S_KOFF} offen offset:{t*1024}{KVAUX()} lds")
                if t == 3: e(f"s_add_u32 s{S_KOFF}, s{S_KOFF}, 16384")
            items.append(kd)
    if do_v:
        for t in range(4):
            def vd(t=t):
                if t == 0: e(f"s_add_u32 m0, s{S_M0V}, {vslot*16384}")
                e(f"buffer_load_dwordx4 v{V_VD + (t & 1)}, {sr(S_VSRD,4)}, s{S_VOFF} offen offset:{t*1024}{KVAUX()} lds")
                if t == 3: e(f"s_add_u32 s{S_VOFF}, s{S_VOFF}, 16384")
            items.append(vd)
    return items

def spread(ops, g0, g1, gaps):
    tot = sum(c for c, _ in ops)
    n = g1 - g0 + 1
    acc = 0.0
    for c, it in ops:
        g = g0 + min(n - 1, int((acc + 0.5 * c) * n / tot))
        gaps[g].append(it)
        acc += c

def run_item(it):
    if callable(it): it()
    elif isinstance(it, tuple): e.ds(it[0], it[1])
    else: e(it)

def body(j, has_T=True, has_PV=True, has_P1=True, dma_k=True, dma_v=True, vm_end=16,
         end_barrier=True, sm_next=True, pre_frags=3, T_frags=(13, 14, 15), next_pre=True, frag0=0,
         tail_hook=None):
    nb = opt.nbuf
    sb_next = (j + 1) & 1
    sb_cur = j & 1
    frs = []
    if has_T:
        for f in T_frags: frs.append(("K1", f))
    if has_PV:
        for b in range(8):
            for kk in range(2): frs.append(("V", b, kk))
    if has_P1:
        for f in range(13): frs.append(("K2", f))
    ncons = len(frs)
    if has_P1 and next_pre:
        for f in (13, 14, 15): frs.append(("K2", f))
    npre = len(T_frags) if has_T else 0
    mf = []
    for n in range(ncons):
        fr = frs[n]; buf = (frag0 + n) % nb
        for X in range(2):
            if fr[0] == "K1": mf.append((n, qk_mfma(buf, fr[1], X, sb_next)))
            elif fr[0] == "V": mf.append((n, pv_mfma(buf, fr[1], fr[2], X, sb_cur)))
            else: mf.append((n, qk_mfma(buf, fr[1], X, sb_cur)))
    if opt.pair_order:
        st = 2 * npre
        i = st
        while i + 3 < len(mf):
            a0, b0, a1, b1 = mf[i:i+4]
            if frs[a0[0]][0] == frs[a1[0]][0]:
                mf[i:i+4] = [a0, a1, b0, b1]
            i += 4
    nm = len(mf)
    last_use = {}
    for m_, (n_, _) in enumerate(mf): last_use[n_] = m_
    gaps = {g: [] for g in range(-1, nm)}
    for n in range(npre, len(frs)):
        fr = frs[n]; buf = (frag0 + n) % nb
        g = last_use[n - nb] if n - nb >= 0 else -1
        if fr[0] == "V":
            rd = vfrag_read(buf, j & 3, fr[1], fr[2], ("f", j, n))
        else:
            rd = kfrag_read(buf, (j + 2) & 3, fr[1], ("f", j, n))
        gaps[g] += rd
    pv0 = 2 * npre
    pv1 = pv0 + (32 if has_PV else 0)
    if sm_next and not opt.no_softmax:
        if has_PV and has_P1:
            spread(softmax_ops(0, sb_next), pv0 + 2, pv1 - 1, gaps)
            spread(softmax_ops(1, sb_next), pv1, nm - 2, gaps)
        else:
            lo = pv0 + 2
            spread(softmax_ops(0, sb_next) + softmax_ops(1, sb_next), lo, nm - 2, gaps)
    if (dma_k or dma_v) and not opt.no_dma:
        items = dma_group((j + 5) & 3, (j + 3) & 3, dma_k, dma_v)
        g = opt.dma_start if has_PV else 1
        for it in items:
            gaps[min(g, nm - 1)].append(it)
            g += opt.dma_step
    for it in gaps[-1]: run_item(it)
    for m, (n, txt) in enumerate(mf):
        if has_PV and m == pv0:
            k = new_site("R2")
            e(f"s_cmp_lg_u32 s{S_PEND}, 0")
            e(f"s_cbranch_scc1 L_stub_{k}")
            e.label(f"L_back_{k}")
        e.wait_lds(("f", j, n))
        e(txt)
        for it in gaps[m]: run_item(it)
    if end_barrier:
        e.wait_lds_all()
        e(f"s_waitcnt vmcnt({vm_end})")
        e("s_barrier")
    return (frag0 + ncons) % nb

def stamp(i, wait=True):
    if not opt.debug_time: return
    e(f"s_memtime s[{S_T0+2*i}:{S_T0+2*i+1}]")
    e(f"s_memrealtime s[{72+2*i}:{73+2*i}]")
    if wait:
        e("s_waitcnt lgkmcnt(0)")
        e.lds_q = []

def gen():
    hdr = open("cdna_kernels/" + NAME + ".s.ref").read().split("\n")
    head = []
    for ln in hdr:
        if ln.startswith("; @launch"):
            break
        head.append(ln)
    out = head + ["; @launch grid=(256,1,1) block=(256,1,1) lds=163840",
                  '.amdgcn_target "amdgcn-amd-amdhsa--gfx950"', ".text",
                  f".globl {NAME}_kernel", ".p2align 8", f".type {NAME}_kernel,@function",
                  f"{NAME}_kernel:"]
    T = S_TMP
    e("s_cmp_ge_u32 s2, 256")
    e("s_cbranch_scc1 L_end")
    e(f"s_load_dwordx4 {sr(T,4)}, s[0:1], 0")
    e(f"s_load_dwordx4 {sr(T+4,4)}, s[0:1], 16")
    if opt.debug_time:
        e(f"s_load_dwordx2 s[64:65], s[0:1], 40")
    stamp(0, wait=False)
    e(f"s_and_b32 s{T+8}, s2, 7")
    e(f"s_lshr_b32 s{T+9}, s2, 4")
    e(f"s_lshl_b32 s{T+9}, s{T+9}, 3")
    e(f"s_add_u32 s{T+9}, s{T+9}, s{T+8}")
    e(f"s_bfe_u32 s{T+10}, s2, 0x10003")
    vL, vq, vh, vx, vy, vz = V_X[0], V_X[1], V_X[2], V_X[3], V_X[4], V_X[5]
    e(f"v_lshrrev_b32 v{vx}, 6, v0")
    e(f"v_and_b32 v{vL}, 63, v0")
    e(f"v_readfirstlane_b32 s{S_W}, v{vx}")
    e(f"v_and_b32 v{vq}, 31, v{vL}")
    e(f"v_lshrrev_b32 v{vh}, 5, v{vL}")
    e(f"s_lshl_b32 s{T+11}, s{T+9}, 1")
    e(f"s_add_u32 s{T+11}, s{T+11}, s{T+10}")
    e(f"s_lshl_b32 s{T+11}, s{T+11}, 17")
    e(f"s_lshl_b32 s{T+9}, s{T+9}, 19")
    e(f"s_mov_b32 s{S_C}, 0x{f32bits(C_SCALE):08x}")
    e(f"s_mov_b32 s{S_INVC}, 0x{f32bits(1.0 / C_SCALE):08x}")
    e(f"s_mov_b32 s{S_THR}, 0x{f32bits(THR):08x}")
    e(f"s_mov_b32 s{S_16K}, 16384")
    e(f"s_mov_b32 s{S_PEND}, 0")
    e(f"s_mov_b32 s{S_FIRST}, 0")
    e(f"s_mov_b32 s{S_KOFF}, 0")
    e(f"s_mov_b32 s{S_VOFF}, 0")
    e(f"s_lshl_b32 s{S_M0K}, s{S_W}, 12")
    e(f"s_add_u32 s{S_M0V}, s{S_M0K}, 65536")
    e("s_waitcnt lgkmcnt(0)")
    for srd, ptr, off, nrec in ((S_QSRD, T, T + 11, 131072), (S_KSRD, T + 2, T + 9, 524288),
                                (S_VSRD, T + 4, T + 9, 524288), (S_OSRD, T + 6, T + 11, 131072)):
        e(f"s_add_u32 s{srd}, s{ptr}, s{off}")
        e(f"s_addc_u32 s{srd+1}, s{ptr+1}, 0")
        e(f"s_and_b32 s{srd+1}, s{srd+1}, 0xffff")
        e(f"s_mov_b32 s{srd+2}, {nrec}")
        e(f"s_mov_b32 s{srd+3}, 0x00020000")
    e(f"v_lshlrev_b32 v{vy}, 9, v{vh}")
    e(f"v_add_u32 v{vy}, s{S_M0K}, v{vy}")
    e(f"s_and_b32 s{T+8}, s{S_W}, 1")
    e(f"s_lshl_b32 s{T+8}, s{T+8}, 3")
    e(f"v_add_u32 v{vz}, s{T+8}, v{vh}")
    for t in range(4):
        e(f"v_add_u32 v{vx}, {2*t}, v{vz}")
        e(f"v_xor_b32 v{vx}, v{vx}, v{vq}")
        e(f"v_lshl_add_u32 v{V_KD+t}, v{vx}, 4, v{vy}")
    def kdma(slot):
        e(f"s_add_u32 m0, s{S_M0K}, {slot*16384}")
        for t in range(4):
            e(f"buffer_load_dwordx4 v{V_KD + t}, {sr(S_KSRD,4)}, s{S_KOFF} offen offset:{t*1024}{KVAUX()} lds")
        e(f"s_add_u32 s{S_KOFF}, s{S_KOFF}, 16384")
    def vdma(slot):
        e(f"s_add_u32 m0, s{S_M0V}, {slot*16384}")
        for t in range(4):
            e(f"buffer_load_dwordx4 v{V_VD + (t&1)}, {sr(S_VSRD,4)}, s{S_VOFF} offen offset:{t*1024}{KVAUX()} lds")
        e(f"s_add_u32 s{S_VOFF}, s{S_VOFF}, 16384")
    kdma(0)
    e(f"s_lshl_b32 s{T+8}, s{S_W}, 15")
    e(f"v_lshlrev_b32 v{vx}, 9, v{vq}")
    e(f"v_lshl_add_u32 v{vx}, v{vh}, 4, v{vx}")
    e(f"v_add_u32 v{V_QO}, s{T+8}, v{vx}")
    VQD = 128
    e(f"v_lshlrev_b32 v{V_X[6]}, 9, v{vh}")
    for t in range(8):
        e(f"v_add_u32 v{vx}, {2*t}, v{vh}")
        e(f"v_xor_b32 v{vx}, v{vx}, v{vq}")
        e(f"v_lshl_add_u32 v{VQD+t}, v{vx}, 4, v{V_X[6]}")
    e(f"s_add_u32 s{T+9}, s{T+8}, 32768")
    wins = [63, opt.w1, opt.w2, opt.w3]
    e(f"s_lshr_b32 s{T+10}, s2, 6")
    for g in range(1, 4):
        if wins[g] < 63:
            e(f"s_cmp_eq_u32 s{T+10}, {g}")
            e(f"s_cbranch_scc1 L_qg{g}")
    for g in range(4):
        if g > 0 and wins[g] >= 63: continue
        if g > 0: e.label(f"L_qg{g}")
        for n in range(32):
            if n % 4 == 0:
                e(f"s_add_u32 m0, s{T+9}, {(n >> 2) * 4096}")
                e(f"s_add_u32 s{T+11}, s{T+8}, {(n >> 2) * 4096}")
            if wins[g] < 63: e(f"s_waitcnt vmcnt({wins[g]})")
            e(f"buffer_load_dwordx4 v{VQD + (n & 7)}, {sr(S_QSRD,4)}, s{T+11} offen offset:{(n & 3)*1024}{QAUX()} lds")
        if wins[g] < 63: e(f"s_waitcnt vmcnt({wins[g]})")
        e("s_branch L_qdone")
    e.label("L_qdone")
    for par in range(2):
        e(f"v_add_u32 v{vx}, {2*par}, v{vh}")
        e(f"v_lshlrev_b32 v{vx}, 2, v{vx}")
        e(f"v_xor_b32 v{vx}, v{vx}, v{vq}")
        e(f"v_lshl_add_u32 v{V_VD+par}, v{vx}, 4, v{vy}")
    kdma(1)
    e(f"v_and_b32 v{vz}, 15, v{vq}")
    e(f"v_lshlrev_b32 v{vy}, 9, v{vq}")
    for ksp in range(8):
        e(f"v_add_u32 v{vx}, {2*ksp}, v{vh}")
        e(f"v_xor_b32 v{vx}, v{vx}, v{vz}")
        e(f"v_lshl_add_u32 v{V_KA+ksp}, v{vx}, 4, v{vy}")
    e(f"v_bfe_u32 v{vz}, v{vL}, 2, 2")
    e(f"v_lshl_add_u32 v{vy}, v{vh}, 2, v{vz}")
    e(f"v_lshlrev_b32 v{vy}, 9, v{vy}")
    e(f"v_add_u32 v{vy}, 0x10000, v{vy}")
    e(f"v_bfe_u32 v{vx}, v{vL}, 4, 1")
    e(f"v_lshl_add_u32 v{vy}, v{vx}, 5, v{vy}")
    e(f"v_and_b32 v{vx}, 3, v{vL}")
    e(f"v_lshl_add_u32 v{vy}, v{vx}, 3, v{vy}")
    for bp in range(4):
        e(f"v_xor_b32 v{vx}, {bp}, v{vz}")
        e(f"v_lshl_add_u32 v{V_VA+bp}, v{vx}, 6, v{vy}")
    for X in range(2):
        e(f"v_mov_b32 v{V_NEGM[X]}, 0x7f800000")
        e(f"v_mov_b32 v{V_MT[X]}, 0xff800000")
        e(f"v_mov_b32 v{V_L[X]}, 0")
        e(f"v_mov_b32 v{V_F[X]}, 1.0")
    for i in range(128):
        e(f"v_mov_b32 v{V_OA+i}, 0")
    for i in range(128):
        e(f"v_accvgpr_write_b32 a{A_OB+i}, 0")
    VQA = 136
    for ksp in range(8):
        e(f"v_add_u32 v{VQA+ksp}, s{T+9}, v{V_KA+ksp}")
    stamp(1)
    for X in range(2):
        e(f"s_waitcnt vmcnt({4 + 16*(1-X)})")
        for ks in range(16):
            e(f"ds_read_b128 {ar(A_Q + 64*X + 4*ks, 4)}, v{VQA + (ks & 7)} offset:{X*16384 + (ks >> 3)*256}")
    e("s_waitcnt lgkmcnt(0)")
    e("s_barrier")
    stamp(2)
    nb = opt.nbuf
    for n in range(min(nb, 16)):
        for s_, tg in kfrag_read(n % nb, 0, n, ("p", n)): e.ds(s_, tg)
    pend = dma_group(2, 0) + dma_group(3, 1)
    nd = 4
    for f in range(13):
        e.wait_lds(("p", f))
        for X in range(2):
            e(qk_mfma(f % nb, f, X, 0))
            if f >= opt.pre_dma_f and pend:
                pend.pop(0)(); nd += 1
        n = f + nb
        if n < 16:
            for s_, tg in kfrag_read(n % nb, 0, n, ("p", n)): e.ds(s_, tg)
    while pend:
        pend.pop(0)(); nd += 1
    e.wait_lds_all()
    e("s_waitcnt vmcnt(16)")
    e("s_barrier")
    stamp(3)
    fr0 = 13 % nb
    fr0 = body(-1, has_PV=False, frag0=fr0)
    e(f"s_mov_b32 s{S_FIRST}, 1")
    e(f"s_mov_b32 s{S_PEND}, 0")
    for X in range(2):
        e(f"v_mov_b32 v{V_F[X]}, 1.0")
    e(f"s_mov_b32 s{S_CNT}, 7")
    stamp(4)
    e.raw(".p2align 6")
    e.label("L_loop")
    f_in = fr0
    for j in range(4):
        fr0 = body(j, frag0=fr0)
    assert fr0 == f_in
    e(f"s_sub_u32 s{S_CNT}, s{S_CNT}, 1")
    e(f"s_cmp_lg_u32 s{S_CNT}, 0")
    e("s_cbranch_scc1 L_loop")
    stamp(5)
    fr0 = body(28, dma_k=False, dma_v=True, vm_end=12, frag0=fr0)
    fr0 = body(29, dma_k=False, dma_v=False, vm_end=0, frag0=fr0)
    fr0 = body(30, has_P1=False, dma_k=False, dma_v=False, end_barrier=False, frag0=fr0)
    fr0 = body(31, has_T=False, has_P1=False, dma_k=False, dma_v=False, end_barrier=False,
               sm_next=False, frag0=fr0)
    stamp(6)
    for X in range(2):
        a_, b_ = V_T[0], V_T[1]
        e(f"v_mov_b32 v{a_}, v{V_L[X]}")
        e(f"v_mov_b32 v{b_}, v{V_L[X]}")
        e(f"v_permlane32_swap_b32 v{a_}, v{b_}")
        e(f"v_add_f32 v{a_}, v{a_}, v{b_}")
        e(f"v_rcp_f32 v{V_L[X]}, v{a_}")
    tmpbase = [128, 144, 160, 176]
    cnt = 0
    for X in range(2):
        for b in range(8):
            tb = tmpbase[cnt % 4]; cnt += 1
            if X == 0:
                src = [V_OA + 16 * b + i for i in range(16)]
                for i in range(16):
                    e(f"v_mul_f32 v{tb+i}, v{src[i]}, v{V_L[X]}")
            else:
                for i in range(16):
                    e(f"v_accvgpr_read_b32 v{tb+i}, a{A_OB + 16*b + i}")
                for i in range(16):
                    e(f"v_mul_f32 v{tb+i}, v{tb+i}, v{V_L[X]}")
            for k in range(8):
                e(f"v_cvt_pk_bf16_f32 v{tb+k}, v{tb+2*k}, v{tb+2*k+1}")
            for g in (0, 2):
                e(f"v_permlane32_swap_b32 v{tb+2*g}, v{tb+2*g+2}")
                e(f"v_permlane32_swap_b32 v{tb+2*g+1}, v{tb+2*g+3}")
            so = "0" if X == 0 else f"s{S_16K}"
            for g in (0, 2):
                e(f"buffer_store_dwordx4 {vr(tb+2*g, 4)}, v{V_QO}, {sr(S_OSRD,4)}, {so} offen offset:{64*b + 16*g}{OAUX()}")
    stamp(7)
    if opt.debug_time:
        e(f"s_lshl_b32 s66, s2, 2")
        e(f"s_add_u32 s66, s66, s{S_W}")
        e(f"s_lshl_b32 s66, s66, 6")
        e("s_mov_b32 s68, s64")
        e("s_and_b32 s69, s65, 0xffff")
        e("s_mov_b32 s70, 65536")
        e("s_mov_b32 s71, 0x00020000")
        e("v_mov_b32 v0, 0")
        for i in range(8):
            e(f"v_mov_b32 v1, s{S_T0+2*i}")
            e(f"buffer_store_dword v1, v0, s[68:71], s66 offen offset:{4*i}")
            e(f"v_mov_b32 v2, s{72+2*i}")
            e(f"buffer_store_dword v2, v0, s[68:71], s66 offen offset:{32+4*i}")
    e.label("L_end")
    e("s_endpgm")
    for kind in ("R1A", "R1B", "R2"):
        for k in rare_sites[kind]:
            e.label(f"L_stub_{k}")
            e(f"s_mov_b32 s{S_SITE}, {k}")
            e(f"s_branch L_{kind}")
    def ret(kind):
        for k in rare_sites[kind]:
            e(f"s_cmp_eq_u32 s{S_SITE}, {k}")
            e(f"s_cbranch_scc1 L_back_{k}")
        e("s_endpgm")
    for X, kind in ((0, "R1A"), (1, "R1B")):
        e.label(f"L_{kind}")
        t0 = V_T[2 * X]; a_, b_ = V_T[4], V_T[5]
        e.nop(2)
        e(f"v_mov_b32 v{a_}, v{t0}")
        e(f"v_mov_b32 v{b_}, v{t0}")
        e(f"v_permlane32_swap_b32 v{a_}, v{b_}")
        e(f"v_max_f32 v{a_}, v{a_}, v{b_}")
        e(f"v_mul_f32 v{a_}, s{S_C}, v{a_}")
        e(f"v_sub_f32 v{a_}, 0, v{a_}")
        e(f"v_min_f32 v{a_}, v{a_}, v{V_NEGM[X]}")
        e(f"v_sub_f32 v{b_}, v{a_}, v{V_NEGM[X]}")
        e(f"v_exp_f32 v{b_}, v{b_}")
        e(f"v_mov_b32 v{V_NEGM[X]}, v{a_}")
        e(f"v_sub_f32 v{a_}, s{S_THR}, v{a_}")
        e(f"v_mul_f32 v{V_MT[X]}, s{S_INVC}, v{a_}")
        e(f"v_mul_f32 v{V_L[X]}, v{V_L[X]}, v{b_}")
        e(f"v_mov_b32 v{V_F[X]}, v{b_}")
        e(f"s_mov_b32 s{S_PEND}, 1")
        e.nop(2)
        ret(kind)
    e.label("L_R2")
    e.nop(16)
    for i in range(128):
        e(f"v_mul_f32 v{V_OA+i}, v{V_OA+i}, v{V_F[0]}")
    for i in range(0, 128, 2):
        a_, b_ = V_T[4], V_T[5]
        e(f"v_accvgpr_read_b32 v{a_}, a{A_OB+i}")
        e(f"v_accvgpr_read_b32 v{b_}, a{A_OB+i+1}")
        e(f"v_mul_f32 v{a_}, v{a_}, v{V_F[1]}")
        e(f"v_mul_f32 v{b_}, v{b_}, v{V_F[1]}")
        e(f"v_accvgpr_write_b32 a{A_OB+i}, v{a_}")
        e(f"v_accvgpr_write_b32 a{A_OB+i+1}, v{b_}")
    e(f"v_mov_b32 v{V_F[0]}, 1.0")
    e(f"v_mov_b32 v{V_F[1]}, 1.0")
    e(f"s_mov_b32 s{S_PEND}, 0")
    e.nop(2)
    ret("R2")
    out += e.lines
    out += ['.section .rodata,"a"', ".p2align 6", f".amdhsa_kernel {NAME}_kernel",
            "  .amdhsa_next_free_vgpr 512", "  .amdhsa_next_free_sgpr 96", "  .amdhsa_accum_offset 256",
            "  .amdhsa_group_segment_fixed_size 0", "  .amdhsa_kernarg_size 48",
            "  .amdhsa_user_sgpr_count 2", "  .amdhsa_user_sgpr_kernarg_segment_ptr 1",
            "  .amdhsa_system_sgpr_workgroup_id_x 1", ".end_amdhsa_kernel", ""]
    return "\n".join(out)

if __name__ == "__main__":
    outp = "cdna_kernels/" + NAME + ".s"
    for a in sys.argv[1:]:
        if a.startswith("-o="): outp = a[3:]
        else:
            k, v = a.split("=")
            setattr(opt, k, type(getattr(opt, k))(int(v)) if not isinstance(getattr(opt, k), bool) else bool(int(v)))
    txt = gen()
    open(outp, "w").write(txt)
    print("wrote", outp, "instrs", e.n_instr)
```

```python
import math, re, struct, sys

NAME = "standalone__mha_softmax__near_ridge"

def f32bits(x):
    return struct.unpack("<I", struct.pack("<f", x))[0]

class Opt:
    nbuf = 4
    dma_start = 0
    dma_step = 2
    debug_time = False
    no_dma = False
    no_softmax = False
    kv_nt = True
    q_nt = True
    o_nt = True
    pre_dma_f = 0
    pair_order = False
    balance = True
    dma_cost = 2
    loop_stamps = False
    epi_budget = 5
    epi_pk = True
    no_frag = False
    debug_dbg = False
    pairmap = 0
    w1 = 63
    w2 = 63
    w3 = 63

opt = Opt()
def KVAUX(): return ' nt' if opt.kv_nt else ''
def QAUX(): return ' nt' if opt.q_nt else ''
def OAUX(): return ' nt' if opt.o_nt else ''

C_SCALE = math.log2(math.e) / 16.0
THR = 8.0

S_QSRD, S_KSRD, S_VSRD, S_OSRD = 4, 8, 12, 16
S_W = 20; S_C = 21; S_KOFF = 22; S_VOFF = 23; S_CNT = 24; S_PEND = 25; S_16K = 26
S_M0K = 27; S_M0V = 28; S_INVC = 29; S_SITE = 30; S_FIRST = 31; S_THR = 32
S_TMP = 36
S_T0 = 48
V_OA = 0
V_SB = [128, 160]
V_FR = 192
V_KA = 216
V_VA = 224
V_KD = 228
V_VD = 232
V_NEGM = [234, 235]
V_MT = [236, 237]
V_L = [238, 239]
V_F = [240, 241]
V_T = [242, 243, 244, 245, 246, 247]
V_QO = 248
V_X = [249, 250, 251, 252, 253, 254, 255]
A_OB = 0
A_Q = 128

def vr(b, n): return f"v[{b}:{b+n-1}]"
def ar(b, n): return f"a[{b}:{b+n-1}]"
def sr(b, n): return f"s[{b}:{b+n-1}]"

REG_RE = re.compile(r"\b([va])\[(\d+):(\d+)\]|\b([va])(\d+)\b")
TRANS = ("v_exp_f32", "v_rcp_f32", "v_log_f32", "v_rsq_f32", "v_sqrt_f32")

def regs_of(tok):
    out = []
    for m in REG_RE.finditer(tok):
        if m.group(1):
            out += [(m.group(1), i) for i in range(int(m.group(2)), int(m.group(3)) + 1)]
        else:
            out.append((m.group(4), int(m.group(5))))
    return out

class Em:
    def __init__(self):
        self.lines = []
        self.pos = 0
        self.mfma_w = {}
        self.valu_w = {}
        self.trans_w = {}
        self.store_r = {}
        self.m0_w = -100
        self.lds_q = []
        self.n_instr = 0

    def raw(self, s):
        self.lines.append(s)

    def label(self, s):
        self.lines.append(s + ":")

    def nop(self, n):
        while n > 0:
            k = min(n, 16)
            self.lines.append(f"    s_nop {k-1}")
            self.pos += k
            n -= k
            self.n_instr += 1

    def need(self, p, dist):
        gap = self.pos - p - 1
        if gap < dist:
            self.nop(dist - gap)

    def __call__(self, s):
        op = s.split()[0]
        rest = s[len(op):]
        ops = [t.strip() for t in rest.split(",")]
        is_mfma = op.startswith("v_mfma")
        is_valu = op.startswith("v_") and not is_mfma
        is_ds = op.startswith("ds_")
        is_vmem = op.startswith("buffer_") or op.startswith("global_")
        allregs = regs_of(rest)
        if is_mfma:
            d = regs_of(ops[0]); a = regs_of(ops[1]); b = regs_of(ops[2]); c = regs_of(ops[3])
            for r in a + b + c:
                if r in self.valu_w: self.need(self.valu_w[r], 2)
            for r in a + b:
                if r in self.mfma_w: self.need(self.mfma_w[r], 12)
            if c and c != d:
                for r in c:
                    if r in self.mfma_w: self.need(self.mfma_w[r], 10)
            self.lines.append("    " + s)
            for r in d: self.mfma_w[r] = self.pos
            self.pos += 1; self.n_instr += 1
            return
        if is_valu or is_ds or is_vmem:
            for r in allregs:
                if r in self.mfma_w: self.need(self.mfma_w[r], 12)
        if is_valu:
            if op.startswith("v_cmp"):
                dst = []; src = allregs
            elif op.startswith("v_permlane"):
                dst = allregs; src = allregs
            elif op.startswith("v_readfirstlane") or op.startswith("v_readlane"):
                dst = []; src = allregs
            else:
                dst = regs_of(ops[0]); src = regs_of(",".join(ops[1:]))
                if op.startswith("v_fmac"): src = src + dst
            if op not in TRANS:
                for r in src:
                    if r in self.trans_w: self.need(self.trans_w[r], 1)
            if op.startswith("v_permlane"):
                for r in src:
                    if r in self.valu_w: self.need(self.valu_w[r], 2)
            if op.startswith("v_readfirstlane") or op.startswith("v_readlane"):
                for r in src:
                    if r in self.valu_w: self.need(self.valu_w[r], 1)
            for r in dst:
                if r in self.store_r: self.need(self.store_r[r], 2)
            self.lines.append("    " + s)
            for r in dst:
                self.valu_w[r] = self.pos
                if op in TRANS: self.trans_w[r] = self.pos
                else: self.trans_w.pop(r, None)
            self.pos += 1; self.n_instr += 1
            return
        if is_vmem and s.rstrip().endswith("lds"):
            self.need(self.m0_w, 1)
        if is_vmem and "store" in op:
            for r in regs_of(ops[0]): self.store_r[r] = self.pos
        if op.startswith("s_") and ops[0] == "m0":
            self.m0_w = self.pos
        self.lines.append("    " + s)
        self.pos += 1; self.n_instr += 1

    def ds(self, s, tag):
        self(s)
        self.lds_q.append(tag)

    def wait_lds(self, tag):
        idx = [i for i, t in enumerate(self.lds_q) if t == tag]
        if not idx:
            return
        n_after = len(self.lds_q) - 1 - idx[-1]
        n_after = min(n_after, 15)
        self(f"s_waitcnt lgkmcnt({n_after})")
        self.lds_q = self.lds_q[idx[-1] + 1:]

    def wait_lds_all(self, extra=""):
        self(f"s_waitcnt lgkmcnt(0){extra}")
        self.lds_q = []

e = Em()
rare_sites = {"R1A": [], "R1B": [], "R2": []}
site_counter = [0]

def new_site(kind):
    k = site_counter[0]; site_counter[0] += 1
    rare_sites[kind].append(k)
    return k

def kfrag_read(buf, slot, f, tag):
    ksp, u = f & 7, f >> 3
    off = slot * 16384 + u * 256
    return [(f"ds_read_b128 {vr(V_FR + 4*buf, 4)}, v{V_KA + ksp} offset:{off}", tag)]

def vfrag_read(buf, slot, b, kk, tag):
    bp, u = b & 3, b >> 2
    out = []
    for i in range(2):
        off = slot * 16384 + kk * 8192 + i * 4096 + u * 256
        out.append((f"ds_read_b64_tr_b16 {vr(V_FR + 4*buf + 2*i, 2)}, v{V_VA + bp} offset:{off}", tag))
    return out

def qk_mfma(buf, f, X, sb):
    s = vr(V_SB[sb] + 16 * X, 16)
    q = ar(A_Q + 64 * X + 4 * f, 4)
    c = "0" if f == 0 else s
    return f"v_mfma_f32_32x32x16_bf16 {s}, {vr(V_FR + 4*buf, 4)}, {q}, {c}"

def pv_mfma(buf, b, kk, X, sb):
    o = vr(V_OA + 16 * b, 16) if X == 0 else ar(A_OB + 16 * b, 16)
    p = vr(V_SB[sb] + 16 * X + 4 * kk, 4)
    return f"v_mfma_f32_32x32x16_bf16 {o}, {vr(V_FR + 4*buf, 4)}, {p}, {o}"

def softmax_ops(X, sb):
    s = [V_SB[sb] + 16 * X + i for i in range(16)]
    t0, t1 = V_T[2 * X], V_T[2 * X + 1]
    ops = []
    A = lambda txt, c=1: ops.append((c, txt))
    A(f"v_max3_f32 v{t0}, v{s[0]}, v{s[1]}, v{s[2]}")
    A(f"v_max3_f32 v{t1}, v{s[3]}, v{s[4]}, v{s[5]}")
    A(f"v_max3_f32 v{t0}, v{t0}, v{s[6]}, v{s[7]}")
    A(f"v_max3_f32 v{t1}, v{t1}, v{s[8]}, v{s[9]}")
    A(f"v_max3_f32 v{t0}, v{t0}, v{s[10]}, v{s[11]}")
    A(f"v_max3_f32 v{t1}, v{t1}, v{s[12]}, v{s[13]}")
    A(f"v_max3_f32 v{t0}, v{t0}, v{s[14]}, v{s[15]}")
    A(f"v_max_f32 v{t0}, v{t0}, v{t1}")
    kind = "R1A" if X == 0 else "R1B"
    def chk():
        k = new_site(kind)
        e(f"v_cmp_gt_f32 vcc, v{t0}, v{V_MT[X]}")
        e(f"s_cbranch_vccnz L_stub_{k}")
        e.label(f"L_back_{k}")
    ops.append((2, chk))
    F = lambda i: A(f"v_fma_f32 v{s[i]}, v{s[i]}, s{S_C}, v{V_NEGM[X]}")
    E = lambda i: A(f"v_exp_f32 v{s[i]}, v{s[i]}", 2)
    AD = lambda i: A(f"v_add_f32 v{V_L[X]}, v{V_L[X]}, v{s[i]}")
    CV = lambda k: A(f"v_cvt_pk_bf16_f32 v{s[k]}, v{s[2*k]}, v{s[2*k+1]}")
    F(0); F(1); E(0)
    for i in range(1, 16):
        if i + 1 < 16: F(i + 1)
        E(i)
        AD(i - 1)
        if i % 2 == 0: CV(i // 2 - 1)
    AD(15)
    CV(7)
    return ops

def dma_group(kslot, vslot, do_k=True, do_v=True):
    items = []
    if do_k:
        def k0():
            e(f"s_add_u32 m0, s{S_M0K}, {kslot*16384}")
        for t in range(4):
            def kd(t=t):
                if t == 0: e(f"s_add_u32 m0, s{S_M0K}, {kslot*16384}")
                e(f"buffer_load_dwordx4 v{V_KD + t}, {sr(S_KSRD,4)}, s{S_KOFF} offen offset:{t*1024}{KVAUX()} lds")
                if t == 3: e(f"s_add_u32 s{S_KOFF}, s{S_KOFF}, 16384")
            items.append(kd)
    if do_v:
        for t in range(4):
            def vd(t=t):
                if t == 0: e(f"s_add_u32 m0, s{S_M0V}, {vslot*16384}")
                e(f"buffer_load_dwordx4 v{V_VD + (t & 1)}, {sr(S_VSRD,4)}, s{S_VOFF} offen offset:{t*1024}{KVAUX()} lds")
                if t == 3: e(f"s_add_u32 s{S_VOFF}, s{S_VOFF}, 16384")
            items.append(vd)
    return items

def spread(ops, g0, g1, gaps, waits=None):
    tot = sum(c for c, _ in ops)
    n = g1 - g0 + 1
    if not opt.balance:
        acc = 0.0
        for c, it in ops:
            g = g0 + min(n - 1, int((acc + 0.5 * c) * n / tot))
            gaps[g].append(it)
            acc += c
        return
    base = {}
    for g in range(g0, g1 + 1):
        b = 0.0
        for it in gaps[g]:
            b += opt.dma_cost if callable(it) else 1.0
        if waits is not None and (g + 1) in waits: b += 1.0
        base[g] = b
    target = (tot + sum(base.values())) / n
    cap = []; acc = 0.0
    for g in range(g0, g1 + 1):
        acc += max(0.0, target - base[g]); cap.append(acc)
    scale = tot / cap[-1]
    cap = [c * scale for c in cap]
    acc = 0.0; gi = 0
    for c, it in ops:
        mid = acc + 0.5 * c
        while gi < n - 1 and mid > cap[gi]: gi += 1
        gaps[g0 + gi].append(it)
        acc += c

def run_item(it):
    if callable(it): it()
    elif isinstance(it, tuple): e.ds(it[0], it[1])
    else: e(it)

def body(j, has_T=True, has_PV=True, has_P1=True, dma_k=True, dma_v=True, vm_end=16,
         end_barrier=True, sm_next=True, pre_frags=3, T_frags=(13, 14, 15), next_pre=True, frag0=0,
         tail_hook=None):
    nb = opt.nbuf
    sb_next = (j + 1) & 1
    sb_cur = j & 1
    frs = []
    if has_T:
        for f in T_frags: frs.append(("K1", f))
    if has_PV:
        for b in range(8):
            for kk in range(2): frs.append(("V", b, kk))
    if has_P1:
        for f in range(13): frs.append(("K2", f))
    ncons = len(frs)
    if has_P1 and next_pre:
        for f in (13, 14, 15): frs.append(("K2", f))
    npre = len(T_frags) if has_T else 0
    mf = []
    for n in range(ncons):
        fr = frs[n]; buf = (frag0 + n) % nb
        for X in range(2):
            if fr[0] == "K1": mf.append((n, qk_mfma(buf, fr[1], X, sb_next)))
            elif fr[0] == "V": mf.append((n, pv_mfma(buf, fr[1], fr[2], X, sb_cur)))
            else: mf.append((n, qk_mfma(buf, fr[1], X, sb_cur)))
    if opt.pair_order:
        st = 2 * npre
        i = st
        while i + 3 < len(mf):
            a0, b0, a1, b1 = mf[i:i+4]
            if frs[a0[0]][0] == frs[a1[0]][0]:
                mf[i:i+4] = [a0, a1, b0, b1]
            i += 4
    nm = len(mf)
    last_use = {}
    for m_, (n_, _) in enumerate(mf): last_use[n_] = m_
    gaps = {g: [] for g in range(-1, nm)}
    for n in range(npre, len(frs)):
        fr = frs[n]; buf = (frag0 + n) % nb
        g = last_use[n - nb] if n - nb >= 0 else -1
        if fr[0] == "V":
            rd = vfrag_read(buf, j & 3, fr[1], fr[2], ("f", j, n))
        else:
            rd = kfrag_read(buf, (j + 2) & 3, fr[1], ("f", j, n))
        if not opt.no_frag: gaps[g] += rd
    pv0 = 2 * npre
    seen = set(); waitset = set()
    for m_, (n_, _) in enumerate(mf):
        if n_ not in seen and n_ >= npre: waitset.add(m_)
        seen.add(n_)
    if (dma_k or dma_v) and not opt.no_dma:
        items = dma_group((j + 5) & 3, (j + 3) & 3, dma_k, dma_v)
        g = opt.dma_start if has_PV else 1
        for it in items:
            gaps[min(g, nm - 1)].append(it)
            g += opt.dma_step
    pv0 = 2 * npre
    pv1 = pv0 + (32 if has_PV else 0)
    if sm_next and not opt.no_softmax:
        if has_PV and has_P1:
            spread(softmax_ops(0, sb_next), pv0 + 2, pv1 - 1, gaps, waitset)
            spread(softmax_ops(1, sb_next), pv1, nm - 2, gaps, waitset)
        else:
            lo = pv0 + 2
            spread(softmax_ops(0, sb_next) + softmax_ops(1, sb_next), lo, nm - 2, gaps, waitset)
    rest = []
    if tail_hook is not None:
        items = tail_hook()
        g = 0; used = 0.0
        for (eg, c, it) in items:
            while g < nm and (g < eg or used + c > opt.epi_budget):
                g += 1; used = 0.0
            if g >= nm: rest.append(it)
            else:
                gaps[g].append(it); used += c
    for it in gaps[-1]: run_item(it)
    for m, (n, txt) in enumerate(mf):
        if has_PV and m == pv0:
            k = new_site("R2")
            e(f"s_cmp_lg_u32 s{S_PEND}, 0")
            e(f"s_cbranch_scc1 L_stub_{k}")
            e.label(f"L_back_{k}")
        e.wait_lds(("f", j, n))
        e(txt)
        for it in gaps[m]: run_item(it)
    for it in rest: run_item(it)
    if end_barrier:
        e.wait_lds_all()
        e(f"s_waitcnt vmcnt({vm_end})")
        e("s_barrier")
    return (frag0 + ncons) % nb

def epilogue_items():
    items = []
    vWA, vRA, vSO, vl = V_KA, V_KA + 1, V_KA + 2, V_KA + 3
    RL = [V_KA + 4, V_KA + 6]
    I = lambda eg, c, it: items.append((eg, c, it))
    I(0, 1, f"v_mbcnt_lo_u32_b32 v{vl}, -1, 0")
    I(0, 1, f"v_mbcnt_hi_u32_b32 v{vl}, -1, v{vl}")
    t0, t1 = V_T[0], V_T[1]
    I(0, 1, f"s_lshl_b32 s{S_TMP+8}, s{S_W}, 14")
    I(0, 1, f"s_lshl_b32 s{S_TMP+9}, s{S_W}, 15")
    I(0, 1, f"s_movk_i32 s{S_TMP+10}, 144")
    I(0, 1, f"v_and_b32 v{t0}, 31, v{vl}")
    I(0, 1, f"v_lshrrev_b32 v{t1}, 5, v{vl}")
    I(0, 1, f"v_mul_u32_u24 v{t0}, 144, v{t0}")
    I(0, 1, f"v_lshl_add_u32 v{t0}, v{t1}, 3, v{t0}")
    I(0, 1, f"v_add_u32 v{vWA}, s{S_TMP+8}, v{t0}")
    I(0, 1, f"v_lshrrev_b32 v{t0}, 3, v{vl}")
    I(0, 1, f"v_and_b32 v{t1}, 7, v{vl}")
    I(0, 1, f"v_lshlrev_b32 v{t1}, 4, v{t1}")
    I(0, 1, f"v_mul_u32_u24 v{vRA}, 144, v{t0}")
    I(0, 1, f"v_add3_u32 v{vRA}, v{vRA}, v{t1}, s{S_TMP+8}")
    I(0, 1, f"v_lshl_add_u32 v{vSO}, v{t0}, 9, v{t1}")
    I(0, 1, f"v_add_u32 v{vSO}, s{S_TMP+9}, v{vSO}")
    for i in range(8):
        I(0, 1, f"s_mov_b32 s{S_TMP+i}, {(i >> 2) * 16384 + (i & 3) * 4096}")
    for X in range(2):
        a_, b_ = V_T[2], V_T[3]
        I(0, 1, f"v_mov_b32 v{a_}, v{V_L[X]}")
        I(0, 1, f"v_mov_b32 v{b_}, v{V_L[X]}")
        I(0, 1, f"v_permlane32_swap_b32 v{a_}, v{b_}")
        I(0, 1, f"v_add_f32 v{a_}, v{a_}, v{b_}")
        I(0, 2, f"v_rcp_f32 v{RL[X]}, v{a_}")
    pending_store = []
    nbuf_st = 0
    for c in range(4):
        eg = 8 * c + 9
        for X in range(2):
            buf = nbuf_st % 3; nbuf_st += 1
            regs = [V_OA + 16 * (2 * c + bb) for bb in range(2)] if X == 0 else [V_SB[0], V_SB[0] + 16]
            for bb in range(2):
                r0 = regs[bb]
                if X == 1:
                    for i in range(16):
                        I(eg, 1, f"v_accvgpr_read_b32 v{r0+i}, a{A_OB + 16*(2*c+bb) + i}")
                if opt.epi_pk and c >= 2:
                    for i in range(0, 16, 2):
                        I(eg, 1, f"v_pk_mul_f32 {vr(r0+i,2)}, {vr(r0+i,2)}, {vr(RL[X],2)} op_sel_hi:[1,0]")
                else:
                    for i in range(16):
                        I(eg, 1, f"v_mul_f32 v{r0+i}, v{r0+i}, v{RL[X]}")
                for k in range(8):
                    I(eg, 1, f"v_cvt_pk_bf16_f32 v{r0+k}, v{r0+2*k}, v{r0+2*k+1}")
                for g in range(4):
                    I(eg, 1, (f"ds_write_b64 v{vWA}, {vr(r0+2*g,2)} offset:{buf*4608 + 64*bb + 16*g}", ("w", c, X)))
                if bb == 0:
                    for it in pending_store: I(eg, 1, it)
                    pending_store = []
            for i in range(4):
                d = regs[i >> 1] + 8 + 4 * (i & 1)
                I(eg, 1, (f"ds_read_b128 {vr(d,4)}, v{vRA} offset:{buf*4608 + i*1152}", ("r", c, X, i)))
            for i in range(4):
                d = regs[i >> 1] + 8 + 4 * (i & 1)
                def st(c=c, X=X, i=i, d=d):
                    e.wait_lds(("r", c, X, i))
                    e(f"buffer_store_dwordx4 {vr(d,4)}, v{vSO}, {sr(S_OSRD,4)}, s{S_TMP + 4*X + i} offen offset:{c*128}{OAUX()}")
                pending_store.append(st)
    for it in pending_store: I(99, 1, it)
    return items

def stamp(i, wait=True):
    if not opt.debug_time: return
    if opt.loop_stamps:
        if i != 4: return
        i = 0
    e(f"s_memtime s[{S_T0+2*i}:{S_T0+2*i+1}]")
    e(f"s_memrealtime s[{72+2*i}:{73+2*i}]")
    if wait:
        e("s_waitcnt lgkmcnt(0)")
        e.lds_q = []

def gen():
    hdr = open("cdna_kernels/" + NAME + ".s.ref").read().split("\n")
    head = []
    for ln in hdr:
        if ln.startswith("; @launch"):
            break
        head.append(ln)
    out = head + ["; @launch grid=(256,1,1) block=(256,1,1) lds=163840",
                  '.amdgcn_target "amdgcn-amd-amdhsa--gfx950"', ".text",
                  f".globl {NAME}_kernel", ".p2align 8", f".type {NAME}_kernel,@function",
                  f"{NAME}_kernel:"]
    T = S_TMP
    e("s_cmp_ge_u32 s2, 256")
    e("s_cbranch_scc1 L_end")
    e(f"s_load_dwordx4 {sr(T,4)}, s[0:1], 0")
    e(f"s_load_dwordx4 {sr(T+4,4)}, s[0:1], 16")
    if opt.debug_time:
        e(f"s_load_dwordx2 s[64:65], s[0:1], {32 if opt.debug_dbg else 40}")
    stamp(0, wait=False)
    if opt.pairmap == 0:
        e(f"s_and_b32 s{T+8}, s2, 7")
        e(f"s_lshr_b32 s{T+9}, s2, 4")
        e(f"s_lshl_b32 s{T+9}, s{T+9}, 3")
        e(f"s_add_u32 s{T+9}, s{T+9}, s{T+8}")
        e(f"s_bfe_u32 s{T+10}, s2, 0x10003")
    else:
        e(f"s_lshr_b32 s{T+9}, s2, 1")
        e(f"s_and_b32 s{T+10}, s2, 1")
    vL, vq, vh, vx, vy, vz = V_X[0], V_X[1], V_X[2], V_X[3], V_X[4], V_X[5]
    e(f"v_lshrrev_b32 v{vx}, 6, v0")
    e(f"v_and_b32 v{vL}, 63, v0")
    e(f"v_readfirstlane_b32 s{S_W}, v{vx}")
    e(f"v_and_b32 v{vq}, 31, v{vL}")
    e(f"v_lshrrev_b32 v{vh}, 5, v{vL}")
    e(f"s_lshl_b32 s{T+11}, s{T+9}, 1")
    e(f"s_add_u32 s{T+11}, s{T+11}, s{T+10}")
    e(f"s_lshl_b32 s{T+11}, s{T+11}, 17")
    e(f"s_lshl_b32 s{T+9}, s{T+9}, 19")
    e(f"s_mov_b32 s{S_C}, 0x{f32bits(C_SCALE):08x}")
    e(f"s_mov_b32 s{S_INVC}, 0x{f32bits(1.0 / C_SCALE):08x}")
    e(f"s_mov_b32 s{S_THR}, 0x{f32bits(THR):08x}")
    e(f"s_mov_b32 s{S_16K}, 16384")
    e(f"s_mov_b32 s{S_PEND}, 0")
    e(f"s_mov_b32 s{S_FIRST}, 0")
    e(f"s_mov_b32 s{S_KOFF}, 0")
    e(f"s_mov_b32 s{S_VOFF}, 0")
    e(f"s_lshl_b32 s{S_M0K}, s{S_W}, 12")
    e(f"s_add_u32 s{S_M0V}, s{S_M0K}, 65536")
    e("s_waitcnt lgkmcnt(0)")
    for srd, ptr, off, nrec in ((S_QSRD, T, T + 11, 131072), (S_KSRD, T + 2, T + 9, 524288),
                                (S_VSRD, T + 4, T + 9, 524288), (S_OSRD, T + 6, T + 11, 131072)):
        e(f"s_add_u32 s{srd}, s{ptr}, s{off}")
        e(f"s_addc_u32 s{srd+1}, s{ptr+1}, 0")
        e(f"s_and_b32 s{srd+1}, s{srd+1}, 0xffff")
        e(f"s_mov_b32 s{srd+2}, {nrec}")
        e(f"s_mov_b32 s{srd+3}, 0x00020000")
    e(f"v_lshlrev_b32 v{vy}, 9, v{vh}")
    e(f"v_add_u32 v{vy}, s{S_M0K}, v{vy}")
    e(f"s_and_b32 s{T+8}, s{S_W}, 1")
    e(f"s_lshl_b32 s{T+8}, s{T+8}, 3")
    e(f"v_add_u32 v{vz}, s{T+8}, v{vh}")
    for t in range(4):
        e(f"v_add_u32 v{vx}, {2*t}, v{vz}")
        e(f"v_xor_b32 v{vx}, v{vx}, v{vq}")
        e(f"v_lshl_add_u32 v{V_KD+t}, v{vx}, 4, v{vy}")
    def kdma(slot):
        e(f"s_add_u32 m0, s{S_M0K}, {slot*16384}")
        for t in range(4):
            e(f"buffer_load_dwordx4 v{V_KD + t}, {sr(S_KSRD,4)}, s{S_KOFF} offen offset:{t*1024}{KVAUX()} lds")
        e(f"s_add_u32 s{S_KOFF}, s{S_KOFF}, 16384")
    def vdma(slot):
        e(f"s_add_u32 m0, s{S_M0V}, {slot*16384}")
        for t in range(4):
            e(f"buffer_load_dwordx4 v{V_VD + (t&1)}, {sr(S_VSRD,4)}, s{S_VOFF} offen offset:{t*1024}{KVAUX()} lds")
        e(f"s_add_u32 s{S_VOFF}, s{S_VOFF}, 16384")
    kdma(0)
    e(f"s_lshl_b32 s{T+8}, s{S_W}, 15")
    e(f"v_lshlrev_b32 v{vx}, 9, v{vq}")
    e(f"v_lshl_add_u32 v{vx}, v{vh}, 4, v{vx}")
    e(f"v_add_u32 v{V_QO}, s{T+8}, v{vx}")
    VQD = 128
    e(f"v_lshlrev_b32 v{V_X[6]}, 9, v{vh}")
    for t in range(8):
        e(f"v_add_u32 v{vx}, {2*t}, v{vh}")
        e(f"v_xor_b32 v{vx}, v{vx}, v{vq}")
        e(f"v_lshl_add_u32 v{VQD+t}, v{vx}, 4, v{V_X[6]}")
    e(f"s_add_u32 s{T+9}, s{T+8}, 32768")
    wins = [63, opt.w1, opt.w2, opt.w3]
    e(f"s_lshr_b32 s{T+10}, s2, 6")
    for g in range(1, 4):
        if wins[g] < 63:
            e(f"s_cmp_eq_u32 s{T+10}, {g}")
            e(f"s_cbranch_scc1 L_qg{g}")
    for g in range(4):
        if g > 0 and wins[g] >= 63: continue
        if g > 0: e.label(f"L_qg{g}")
        for n in range(32):
            if n % 4 == 0:
                e(f"s_add_u32 m0, s{T+9}, {(n >> 2) * 4096}")
                e(f"s_add_u32 s{T+11}, s{T+8}, {(n >> 2) * 4096}")
            if wins[g] < 63: e(f"s_waitcnt vmcnt({wins[g]})")
            e(f"buffer_load_dwordx4 v{VQD + (n & 7)}, {sr(S_QSRD,4)}, s{T+11} offen offset:{(n & 3)*1024}{QAUX()} lds")
        if wins[g] < 63: e(f"s_waitcnt vmcnt({wins[g]})")
        e("s_branch L_qdone")
    e.label("L_qdone")
    for par in range(2):
        e(f"v_add_u32 v{vx}, {2*par}, v{vh}")
        e(f"v_lshlrev_b32 v{vx}, 2, v{vx}")
        e(f"v_xor_b32 v{vx}, v{vx}, v{vq}")
        e(f"v_lshl_add_u32 v{V_VD+par}, v{vx}, 4, v{vy}")
    kdma(1)
    e(f"v_and_b32 v{vz}, 15, v{vq}")
    e(f"v_lshlrev_b32 v{vy}, 9, v{vq}")
    for ksp in range(8):
        e(f"v_add_u32 v{vx}, {2*ksp}, v{vh}")
        e(f"v_xor_b32 v{vx}, v{vx}, v{vz}")
        e(f"v_lshl_add_u32 v{V_KA+ksp}, v{vx}, 4, v{vy}")
    e(f"v_bfe_u32 v{vz}, v{vL}, 2, 2")
    e(f"v_lshl_add_u32 v{vy}, v{vh}, 2, v{vz}")
    e(f"v_lshlrev_b32 v{vy}, 9, v{vy}")
    e(f"v_add_u32 v{vy}, 0x10000, v{vy}")
    e(f"v_bfe_u32 v{vx}, v{vL}, 4, 1")
    e(f"v_lshl_add_u32 v{vy}, v{vx}, 5, v{vy}")
    e(f"v_and_b32 v{vx}, 3, v{vL}")
    e(f"v_lshl_add_u32 v{vy}, v{vx}, 3, v{vy}")
    for bp in range(4):
        e(f"v_xor_b32 v{vx}, {bp}, v{vz}")
        e(f"v_lshl_add_u32 v{V_VA+bp}, v{vx}, 6, v{vy}")
    for X in range(2):
        e(f"v_mov_b32 v{V_NEGM[X]}, 0x7f800000")
        e(f"v_mov_b32 v{V_MT[X]}, 0xff800000")
        e(f"v_mov_b32 v{V_L[X]}, 0")
        e(f"v_mov_b32 v{V_F[X]}, 1.0")
    for i in range(128):
        e(f"v_mov_b32 v{V_OA+i}, 0")
    for i in range(128):
        e(f"v_accvgpr_write_b32 a{A_OB+i}, 0")
    VQA = 136
    for ksp in range(8):
        e(f"v_add_u32 v{VQA+ksp}, s{T+9}, v{V_KA+ksp}")
    stamp(1)
    for X in range(2):
        e(f"s_waitcnt vmcnt({4 + 16*(1-X)})")
        for ks in range(16):
            e(f"ds_read_b128 {ar(A_Q + 64*X + 4*ks, 4)}, v{VQA + (ks & 7)} offset:{X*16384 + (ks >> 3)*256}")
    e("s_waitcnt lgkmcnt(0)")
    e("s_barrier")
    stamp(2)
    nb = opt.nbuf
    for n in range(min(nb, 16)):
        for s_, tg in kfrag_read(n % nb, 0, n, ("p", n)): e.ds(s_, tg)
    pend = dma_group(2, 0) + dma_group(3, 1)
    nd = 4
    for f in range(13):
        e.wait_lds(("p", f))
        for X in range(2):
            e(qk_mfma(f % nb, f, X, 0))
            if f >= opt.pre_dma_f and pend:
                pend.pop(0)(); nd += 1
        n = f + nb
        if n < 16:
            for s_, tg in kfrag_read(n % nb, 0, n, ("p", n)): e.ds(s_, tg)
    while pend:
        pend.pop(0)(); nd += 1
    e.wait_lds_all()
    e("s_waitcnt vmcnt(16)")
    e("s_barrier")
    stamp(3)
    fr0 = 13 % nb
    fr0 = body(-1, has_PV=False, frag0=fr0)
    e(f"s_mov_b32 s{S_FIRST}, 1")
    e(f"s_mov_b32 s{S_PEND}, 0")
    for X in range(2):
        e(f"v_mov_b32 v{V_F[X]}, 1.0")
    e(f"s_mov_b32 s{S_CNT}, 7")
    stamp(4)
    e.raw(".p2align 6")
    e.label("L_loop")
    f_in = fr0
    for j in range(4):
        fr0 = body(j, frag0=fr0)
    assert fr0 == f_in
    if opt.loop_stamps:
        e("s_memtime s[88:89]")
        e("s_memrealtime s[90:91]")
        e("s_waitcnt lgkmcnt(0)")
        for k in range(1, 8):
            e(f"s_cmp_eq_u32 s{S_CNT}, {8-k}")
            e(f"s_cselect_b32 s{S_T0+2*k}, s88, s{S_T0+2*k}")
            e(f"s_cselect_b32 s{72+2*k}, s90, s{72+2*k}")
    e(f"s_sub_u32 s{S_CNT}, s{S_CNT}, 1")
    e(f"s_cmp_lg_u32 s{S_CNT}, 0")
    e("s_cbranch_scc1 L_loop")
    stamp(5)
    fr0 = body(28, dma_k=False, dma_v=True, vm_end=12, frag0=fr0)
    fr0 = body(29, dma_k=False, dma_v=False, vm_end=0, frag0=fr0)
    fr0 = body(30, has_P1=False, dma_k=False, dma_v=False, end_barrier=False, frag0=fr0)
    stamp(6)
    fr0 = body(31, has_T=False, has_P1=False, dma_k=False, dma_v=False, end_barrier=False,
               sm_next=False, frag0=fr0, tail_hook=epilogue_items)
    stamp(7)
    if opt.debug_time:
        e(f"s_lshl_b32 s66, s2, 2")
        e(f"s_add_u32 s66, s66, s{S_W}")
        e(f"s_lshl_b32 s66, s66, 6")
        e("s_mov_b32 s68, s64")
        e("s_and_b32 s69, s65, 0xffff")
        e(f"s_mov_b32 s70, {64 if opt.debug_dbg else 65536}")
        e("s_mov_b32 s71, 0x00020000")
        e("v_mov_b32 v0, 0")
        for i in range(8):
            e(f"v_mov_b32 v1, s{S_T0+2*i}")
            e(f"buffer_store_dword v1, v0, s[68:71], s66 offen offset:{4*i}")
            e(f"v_mov_b32 v2, s{72+2*i}")
            e(f"buffer_store_dword v2, v0, s[68:71], s66 offen offset:{32+4*i}")
    e.label("L_end")
    e("s_endpgm")
    for kind in ("R1A", "R1B", "R2"):
        for k in rare_sites[kind]:
            e.label(f"L_stub_{k}")
            e(f"s_mov_b32 s{S_SITE}, {k}")
            e(f"s_branch L_{kind}")
    def ret(kind):
        for k in rare_sites[kind]:
            e(f"s_cmp_eq_u32 s{S_SITE}, {k}")
            e(f"s_cbranch_scc1 L_back_{k}")
        e("s_endpgm")
    for X, kind in ((0, "R1A"), (1, "R1B")):
        e.label(f"L_{kind}")
        t0 = V_T[2 * X]; a_, b_ = V_T[4], V_T[5]
        e.nop(2)
        e(f"v_mov_b32 v{a_}, v{t0}")
        e(f"v_mov_b32 v{b_}, v{t0}")
        e(f"v_permlane32_swap_b32 v{a_}, v{b_}")
        e(f"v_max_f32 v{a_}, v{a_}, v{b_}")
        e(f"v_mul_f32 v{a_}, s{S_C}, v{a_}")
        e(f"v_sub_f32 v{a_}, 0, v{a_}")
        e(f"v_min_f32 v{a_}, v{a_}, v{V_NEGM[X]}")
        e(f"v_sub_f32 v{b_}, v{a_}, v{V_NEGM[X]}")
        e(f"v_exp_f32 v{b_}, v{b_}")
        e(f"v_mov_b32 v{V_NEGM[X]}, v{a_}")
        e(f"v_sub_f32 v{a_}, s{S_THR}, v{a_}")
        e(f"v_mul_f32 v{V_MT[X]}, s{S_INVC}, v{a_}")
        e(f"v_mul_f32 v{V_L[X]}, v{V_L[X]}, v{b_}")
        e(f"v_mov_b32 v{V_F[X]}, v{b_}")
        e(f"s_mov_b32 s{S_PEND}, 1")
        e.nop(2)
        ret(kind)
    e.label("L_R2")
    e.nop(16)
    for i in range(128):
        e(f"v_mul_f32 v{V_OA+i}, v{V_OA+i}, v{V_F[0]}")
    for i in range(0, 128, 2):
        a_, b_ = V_T[4], V_T[5]
        e(f"v_accvgpr_read_b32 v{a_}, a{A_OB+i}")
        e(f"v_accvgpr_read_b32 v{b_}, a{A_OB+i+1}")
        e(f"v_mul_f32 v{a_}, v{a_}, v{V_F[1]}")
        e(f"v_mul_f32 v{b_}, v{b_}, v{V_F[1]}")
        e(f"v_accvgpr_write_b32 a{A_OB+i}, v{a_}")
        e(f"v_accvgpr_write_b32 a{A_OB+i+1}, v{b_}")
    e(f"v_mov_b32 v{V_F[0]}, 1.0")
    e(f"v_mov_b32 v{V_F[1]}, 1.0")
    e(f"s_mov_b32 s{S_PEND}, 0")
    e.nop(2)
    ret("R2")
    out += e.lines
    out += ['.section .rodata,"a"', ".p2align 6", f".amdhsa_kernel {NAME}_kernel",
            "  .amdhsa_next_free_vgpr 512", "  .amdhsa_next_free_sgpr 96", "  .amdhsa_accum_offset 256",
            "  .amdhsa_group_segment_fixed_size 0", "  .amdhsa_kernarg_size 48",
            "  .amdhsa_user_sgpr_count 2", "  .amdhsa_user_sgpr_kernarg_segment_ptr 1",
            "  .amdhsa_system_sgpr_workgroup_id_x 1", ".end_amdhsa_kernel", ""]
    return "\n".join(out)

if __name__ == "__main__":
    outp = "cdna_kernels/" + NAME + ".s"
    for a in sys.argv[1:]:
        if a.startswith("-o="): outp = a[3:]
        else:
            k, v = a.split("=")
            setattr(opt, k, type(getattr(opt, k))(int(v)) if not isinstance(getattr(opt, k), bool) else bool(int(v)))
    txt = gen()
    open(outp, "w").write(txt)
    print("wrote", outp, "instrs", e.n_instr)
```

```python
import math, re, struct, sys

NAME = "standalone__mha_softmax__near_ridge"

def f32bits(x):
    return struct.unpack("<I", struct.pack("<f", x))[0]

class Opt:
    nbuf = 4
    dma_start = 1
    dma_step = 4
    debug_time = False
    no_dma = False
    no_softmax = False
    kv_nt = True
    q_nt = True
    o_nt = True
    pre_dma_f = 0
    pair_order = False
    q_first = 2
    ring_mode = 2
    cap2 = True
    cap = 2
    pace = 80
    dot2 = False
    qwin = 63
    ilv = False
    wait2 = True
    pkfma = False
    pkadd = False
    sm_lo = 6
    pv16 = False
    qk16 = False
    sm_split = 50
    balance = True
    dma_cost = 2
    loop_stamps = False
    epi_budget = 2
    epi_pk = True
    no_frag = False
    debug_dbg = False
    pairmap = 0
    w1 = 63
    w2 = 63
    w3 = 63

opt = Opt()
def KVAUX(): return ' nt' if opt.kv_nt else ''
def QAUX(): return ' nt' if opt.q_nt else ''
def OAUX(): return ' nt' if opt.o_nt else ''

C_SCALE = math.log2(math.e) / 16.0
THR = 8.0

S_QSRD, S_KSRD, S_VSRD, S_OSRD = 4, 8, 12, 16
S_W = 20; S_C = 21; S_KOFF = 22; S_VOFF = 23; S_CNT = 24; S_PEND = 25; S_16K = 26
S_M0K = 27; S_M0V = 28; S_INVC = 29; S_SITE = 30; S_FIRST = 31; S_THR = 32
S_CP = 33
S_ONES = 29
S_C2 = 34
S_TMP = 36
S_T0 = 48
V_OA = 0
V_SB = [128, 160]
V_FR = 192
V_NM4 = 208
V_KA = 224
V_VA = 228
V_KD = 236
V_VD = 240
V_L = [244, 245, 246, 247]
V_F = [248, 249, 250, 251]
V_T = [252, 253, 254, 255]
V_X = [144, 145, 146, 147, 148, 149, 150]
NX = 4
A_OB = 0
A_Q = 128

def vr(b, n): return f"v[{b}:{b+n-1}]"
def ar(b, n): return f"a[{b}:{b+n-1}]"
def sr(b, n): return f"s[{b}:{b+n-1}]"

REG_RE = re.compile(r"\b([va])\[(\d+):(\d+)\]|\b([va])(\d+)\b")
TRANS = ("v_exp_f32", "v_rcp_f32", "v_log_f32", "v_rsq_f32", "v_sqrt_f32")

def regs_of(tok):
    out = []
    for m in REG_RE.finditer(tok):
        if m.group(1):
            out += [(m.group(1), i) for i in range(int(m.group(2)), int(m.group(3)) + 1)]
        else:
            out.append((m.group(4), int(m.group(5))))
    return out

class Em:
    def __init__(self):
        self.lines = []
        self.pos = 0
        self.mfma_w = {}
        self.valu_w = {}
        self.trans_w = {}
        self.store_r = {}
        self.m0_w = -100
        self.lds_q = []
        self.n_instr = 0

    def raw(self, s):
        self.lines.append(s)

    def label(self, s):
        self.lines.append(s + ":")

    def nop(self, n):
        while n > 0:
            k = min(n, 16)
            self.lines.append(f"    s_nop {k-1}")
            self.pos += k
            n -= k
            self.n_instr += 1

    def need(self, p, dist):
        gap = self.pos - p - 1
        if gap < dist:
            self.nop(dist - gap)

    def __call__(self, s):
        op = s.split()[0]
        rest = s[len(op):]
        ops = [t.strip() for t in rest.split(",")]
        is_mfma = op.startswith("v_mfma")
        is_valu = op.startswith("v_") and not is_mfma
        is_ds = op.startswith("ds_")
        is_vmem = op.startswith("buffer_") or op.startswith("global_")
        allregs = regs_of(rest)
        if is_mfma:
            d = regs_of(ops[0]); a = regs_of(ops[1]); b = regs_of(ops[2]); c = regs_of(ops[3])
            for r in a + b + c:
                if r in self.valu_w: self.need(self.valu_w[r], 2)
            for r in a + b:
                if r in self.mfma_w: self.need(self.mfma_w[r], 12)
            if c and c != d:
                for r in c:
                    if r in self.mfma_w: self.need(self.mfma_w[r], 10)
            self.lines.append("    " + s)
            for r in d: self.mfma_w[r] = self.pos
            self.pos += 1; self.n_instr += 1
            return
        if is_valu or is_ds or is_vmem:
            for r in allregs:
                if r in self.mfma_w: self.need(self.mfma_w[r], 12)
        if is_valu:
            if op.startswith("v_cmp"):
                dst = []; src = allregs
            elif op.startswith("v_permlane"):
                dst = allregs; src = allregs
            elif op.startswith("v_readfirstlane") or op.startswith("v_readlane"):
                dst = []; src = allregs
            else:
                dst = regs_of(ops[0]); src = regs_of(",".join(ops[1:]))
                if op.startswith("v_fmac"): src = src + dst
            if op not in TRANS:
                for r in src:
                    if r in self.trans_w: self.need(self.trans_w[r], 1)
            if op.startswith("v_permlane"):
                for r in src:
                    if r in self.valu_w: self.need(self.valu_w[r], 2)
            if op.startswith("v_readfirstlane") or op.startswith("v_readlane"):
                for r in src:
                    if r in self.valu_w: self.need(self.valu_w[r], 1)
            for r in dst:
                if r in self.store_r: self.need(self.store_r[r], 2)
            self.lines.append("    " + s)
            for r in dst:
                self.valu_w[r] = self.pos
                if op in TRANS: self.trans_w[r] = self.pos
                else: self.trans_w.pop(r, None)
            self.pos += 1; self.n_instr += 1
            return
        if is_vmem and s.rstrip().endswith("lds"):
            self.need(self.m0_w, 1)
        if is_vmem and "store" in op:
            for r in regs_of(ops[0]): self.store_r[r] = self.pos
        if op.startswith("s_") and ops[0] == "m0":
            self.m0_w = self.pos
        self.lines.append("    " + s)
        self.pos += 1; self.n_instr += 1

    def ds(self, s, tag):
        self(s)
        self.lds_q.append(tag)

    def wait_lds(self, tag):
        idx = [i for i, t in enumerate(self.lds_q) if t == tag]
        if not idx:
            return
        n_after = len(self.lds_q) - 1 - idx[-1]
        n_after = min(n_after, 15)
        self(f"s_waitcnt lgkmcnt({n_after})")
        self.lds_q = self.lds_q[idx[-1] + 1:]

    def wait_lds_all(self, extra=""):
        self(f"s_waitcnt lgkmcnt(0){extra}")
        self.lds_q = []

e = Em()
rare_sites = {"R10": [], "R11": [], "R2": []}
site_counter = [0]

def new_site(kind):
    k = site_counter[0]; site_counter[0] += 1
    rare_sites[kind].append(k)
    return k

def kfrag_read(buf, slot, f, tag):
    ks, kb = f >> 1, f & 1
    off = slot * 16384 + kb * 8192 + (ks >> 2) * 256
    return [(f"ds_read_b128 {vr(V_FR + 4*buf, 4)}, v{V_KA + (ks & 3)} offset:{off}", tag)]

def vfrag_read(buf, slot, db, kk, tag):
    out = []
    for i in range(2):
        off = slot * 16384 + i * 8192 + (db >> 3) * 256
        out.append((f"ds_read_b64_tr_b16 {vr(V_FR + 4*buf + 2*i, 2)}, v{V_VA + (db & 7)} offset:{off}", tag))
    return out

def oreg(X, db):
    return vr(V_OA + 64 * X + 4 * db, 4) if X < 2 else ar(A_OB + 64 * (X - 2) + 4 * db, 4)

def qk_mfma(buf, f, X, sb):
    ks, kb = f >> 1, f & 1
    s = vr(V_SB[sb] + 8 * X + 4 * kb, 4)
    q = ar(A_Q + 32 * X + 4 * ks, 4)
    c = vr(V_NM4 + 4 * X, 4) if ks == 0 else s
    return f"v_mfma_f32_16x16x32_bf16 {s}, {vr(V_FR + 4*buf, 4)}, {q}, {c}"

def pv_mfma(buf, db, kk, X, sb):
    o = oreg(X, db)
    p = vr(V_SB[sb] + 8 * X, 4)
    return f"v_mfma_f32_16x16x32_bf16 {o}, {vr(V_FR + 4*buf, 4)}, {p}, {o}"

def tree_ops(sb, force=False):
    s = [V_SB[sb] + i for i in range(32)]
    ops = []
    A = lambda txt, c=1: ops.append((c, txt))
    kind = f"R1{sb}"
    if force:
        def call():
            k = new_site(kind)
            e(f"s_branch L_stub_{k}")
            e.label(f"L_back_{k}")
        ops.append((1, call))
        return ops
    t0, t1 = V_T[0], V_T[1]
    A(f"v_max3_f32 v{t0}, v{s[0]}, v{s[1]}, v{s[2]}")
    A(f"v_max3_f32 v{t1}, v{s[3]}, v{s[4]}, v{s[5]}")
    i = 6; tt = [t0, t1]; k = 0
    while i + 1 < 32:
        A(f"v_max3_f32 v{tt[k]}, v{tt[k]}, v{s[i]}, v{s[i+1]}")
        i += 2; k ^= 1
    A(f"v_max_f32 v{t0}, v{t0}, v{t1}")
    def chk():
        k = new_site(kind)
        e(f"v_cmp_lt_f32 vcc, s{S_THR}, v{t0}")
        e(f"s_cbranch_vccnz L_stub_{k}")
        e.label(f"L_back_{k}")
    ops.append((2, chk))
    return ops

def softmax_ops(X, sb):
    s = [V_SB[sb] + 8 * X + i for i in range(8)]
    ops = []
    A = lambda txt, c=1: ops.append((c, txt))
    E = lambda i: A(f"v_exp_f32 v{s[i]}, v{s[i]}", 2)
    AD = lambda i: A(f"v_add_f32 v{V_L[X]}, v{V_L[X]}, v{s[i]}")
    CV = lambda k: A(f"v_cvt_pk_bf16_f32 v{s[k]}, v{s[2*k]}, v{s[2*k+1]}")
    if opt.dot2:
        DT = lambda k: A(f"v_dot2_f32_bf16 v{V_L[X]}, v{s[k]}, s{S_ONES}, v{V_L[X]}")
        E(0); E(1); E(2); CV(0); E(3); DT(0); E(4); CV(1); E(5); DT(1); E(6); CV(2); E(7); DT(2); CV(3); DT(3)
        return ops
    E(0)
    for i in range(1, 8):
        E(i)
        AD(i - 1)
        if i % 2 == 0: CV(i // 2 - 1)
    AD(7)
    CV(3)
    return ops

def dma_group(kslot, vslot, do_k=True, do_v=True):
    items = []
    if do_k:
        def k0():
            e(f"s_add_u32 m0, s{S_M0K}, {kslot*16384}")
        for t in range(4):
            def kd(t=t):
                if t == 0: e(f"s_add_u32 m0, s{S_M0K}, {kslot*16384}")
                e(f"buffer_load_dwordx4 v{V_KD + t}, {sr(S_KSRD,4)}, s{S_KOFF} offen offset:{t*1024}{KVAUX()} lds")
                if t == 3: e(f"s_add_u32 s{S_KOFF}, s{S_KOFF}, 16384")
            items.append(kd)
    if do_v:
        for t in range(4):
            def vd(t=t):
                if t == 0: e(f"s_add_u32 m0, s{S_M0V}, {vslot*16384}")
                e(f"buffer_load_dwordx4 v{V_VD + t}, {sr(S_VSRD,4)}, s{S_VOFF} offen offset:{t*1024}{KVAUX()} lds")
                if t == 3: e(f"s_add_u32 s{S_VOFF}, s{S_VOFF}, 16384")
            items.append(vd)
    return items

def spread(ops, g0, g1, gaps, waits=None):
    tot = sum(c for c, _ in ops)
    n = g1 - g0 + 1
    if not opt.balance:
        acc = 0.0
        for c, it in ops:
            g = g0 + min(n - 1, int((acc + 0.5 * c) * n / tot))
            gaps[g].append(it)
            acc += c
        return
    base = {}
    for g in range(g0, g1 + 1):
        b = 0.0
        for it in gaps[g]:
            b += opt.dma_cost if callable(it) else 1.0
        if waits is not None and (g + 1) in waits: b += 1.0
        base[g] = b
    target = (tot + sum(base.values())) / n
    cap = []; acc = 0.0
    for g in range(g0, g1 + 1):
        acc += max(0.0, target - base[g]); cap.append(acc)
    scale = tot / cap[-1]
    cap = [c * scale for c in cap]
    acc = 0.0; gi = 0
    for c, it in ops:
        mid = acc + 0.5 * c
        while gi < n - 1 and mid > cap[gi]: gi += 1
        gaps[g0 + gi].append(it)
        acc += c

def run_item(it):
    if callable(it): it()
    elif isinstance(it, tuple): e.ds(it[0], it[1])
    else: e(it)

def body(j, has_T=True, has_PV=True, has_P1=True, dma_k=True, dma_v=True, vm_end=16,
         end_barrier=True, sm_next=True, pre_frags=3, T_frags=(13, 14, 15), next_pre=True, frag0=0,
         tail_hook=None):
    nb = opt.nbuf
    sb_next = (j + 1) & 1
    sb_cur = j & 1
    frs = []
    if has_T:
        for f in T_frags: frs.append(("K1", f))
    if has_PV:
        for b in range(16): frs.append(("V", b, 0))
    if has_P1:
        for f in range(13): frs.append(("K2", f))
    ncons = len(frs)
    if has_P1 and next_pre:
        for f in (13, 14, 15): frs.append(("K2", f))
    npre = len(T_frags) if has_T else 0
    mf = []
    for n in range(ncons):
        fr = frs[n]; buf = (frag0 + n) % nb
        for X in range(NX):
            if fr[0] == "K1": mf.append((n, qk_mfma(buf, fr[1], X, sb_next)))
            elif fr[0] == "V": mf.append((n, pv_mfma(buf, fr[1], fr[2], X, sb_cur)))
            else: mf.append((n, qk_mfma(buf, fr[1], X, sb_cur)))
    if opt.pair_order:
        st = 2 * npre
        i = st
        while i + 3 < len(mf):
            a0, b0, a1, b1 = mf[i:i+4]
            if frs[a0[0]][0] == frs[a1[0]][0]:
                mf[i:i+4] = [a0, a1, b0, b1]
            i += 4
    nm = len(mf)
    last_use = {}
    for m_, (n_, _) in enumerate(mf): last_use[n_] = m_
    gaps = {g: [] for g in range(-1, nm)}
    pv0 = NX * npre
    pv1 = pv0 + (64 if has_PV else 0)
    seen = set(); waitset = set()
    for m_, (n_, _) in enumerate(mf):
        if n_ not in seen and n_ >= npre and not (opt.wait2 and (n_ - npre) % 2 == 1): waitset.add(m_)
        seen.add(n_)
    load = {g: 0.0 for g in range(-1, nm)}
    for m_ in waitset: load[m_ - 1] += 1
    if has_PV and pv0 > 0: load[pv0 - 1] += 2
    if end_barrier: load[nm - 1] += 3
    def place(it, g0, c, slack):
        for g in range(g0, min(nm, g0 + slack + 1)):
            if g < 0 or load[g] + c <= opt.cap:
                gaps[g].append(it); load[g] += c; return g
        gaps[g0].append(it); load[g0] += c; return g0
    for n in range(npre, len(frs)):
        fr = frs[n]; buf = (frag0 + n) % nb
        g = last_use[n - nb] if n - nb >= 0 else -1
        if fr[0] == "V":
            rd = vfrag_read(buf, j & 3, fr[1], fr[2], ("f", j, n))
        else:
            rd = kfrag_read(buf, (j + 2) & 3, fr[1], ("f", j, n))
        if opt.no_frag: continue
        for r_ in rd:
            g = place(r_, g, 1, 2 if opt.cap2 else 0)
    if (dma_k or dma_v) and not opt.no_dma:
        items = dma_group((j + 5) & 3, (j + 3) & 3, dma_k, dma_v)
        g = opt.dma_start if has_PV else 1
        gl = 0
        for it in items:
            gl = place(it, max(gl, min(g, nm - 1)), opt.dma_cost, 3 if opt.cap2 else 0)
            g += opt.dma_step
    if sm_next and not opt.no_softmax:
        allops = []
        if not has_PV:
            gaps[pv0 - 1] += [it for _, it in tree_ops(sb_next, force=True)]
        else:
            allops += tree_ops(sb_next)
        ntree = len(allops)
        blocks = [softmax_ops(X, sb_next) for X in range(NX)]
        if not opt.cap2:
            for b_ in blocks: allops += b_
            spread(allops, pv0 + opt.sm_lo, nm - 3, gaps, waitset)
        else:
            ops = []
            for i, (c, it) in enumerate(allops):
                ops.append([c, it, [i - 1] if i else [], False])
            chk = ntree - 1
            for b_ in blocks:
                idx = {}
                for (c, it) in b_:
                    w = it.split()
                    dst = int(w[1][1:-1])
                    if w[0] == "v_exp_f32":
                        ops.append([c, it, [chk] if chk >= 0 else [], True]); idx[("E", dst)] = len(ops) - 1
                    elif w[0] == "v_add_f32":
                        src = int(w[3][1:])
                        d = [idx[("E", src)]] + ([idx["lastA"]] if "lastA" in idx else [])
                        ops.append([c, it, d, False]); idx[("A", src)] = len(ops) - 1; idx["lastA"] = len(ops) - 1
                    else:
                        s0 = int(w[2][1:-1]); s1 = int(w[3][1:])
                        d = [idx[("E", s0)], idx[("E", s1)], idx[("A", s0)], idx[("A", s1)]]
                        if ("A", dst) in idx: d.append(idx[("A", dst)])
                        if "lastC" in idx: d.append(idx["lastC"])
                        ops.append([c, it, d, False]); idx["lastC"] = len(ops) - 1
            placed = {}
            g = pv0 + opt.sm_lo
            glast = nm - 3
            tot = sum(o[0] for o in ops); done = 0.0
            while len(placed) < len(ops):
                if g > glast:
                    for i, o in enumerate(ops):
                        if i not in placed:
                            gaps[glast].append(o[1]); placed[i] = glast
                    break
                progress = True
                while progress:
                    progress = False
                    frac = (g - (pv0 + opt.sm_lo) + 1) / (glast - (pv0 + opt.sm_lo) + 1)
                    if done > tot * frac * 100.0 / opt.pace + 2: break
                    for i, o in enumerate(ops):
                        if i in placed: continue
                        if load[g] + o[0] > opt.cap: continue
                        ok = all((d in placed) and (placed[d] < g or not ops[d][3]) for d in o[2])
                        if ok:
                            gaps[g].append(o[1]); load[g] += o[0]; placed[i] = g; done += o[0]
                            progress = True
                            break
                g += 1
    rest = []
    if tail_hook is not None:
        items = tail_hook()
        g = 0; used = 0.0
        for (eg, c, it) in items:
            while g < nm and (g < eg or used + c > opt.epi_budget):
                g += 1; used = 0.0
            if g >= nm: rest.append(it)
            else:
                gaps[g].append(it); used += c
    for it in gaps[-1]: run_item(it)
    for m, (n, txt) in enumerate(mf):
        if has_PV and m == pv0:
            k = new_site("R2")
            e(f"s_cmp_lg_u32 s{S_PEND}, 0")
            e(f"s_cbranch_scc1 L_stub_{k}")
            e.label(f"L_back_{k}")
        if opt.wait2 and (n - npre) % 2 == 0 and ("f", j, n + 1) in e.lds_q and n + 1 < ncons:
            e.wait_lds(("f", j, n + 1))
        else:
            e.wait_lds(("f", j, n))
        if isinstance(txt, list):
            its = gaps[m]; hlf = (len(its) + 1) // 2
            e(txt[0])
            for it in its[:hlf]: run_item(it)
            e(txt[1])
            for it in its[hlf:]: run_item(it)
            continue
        e(txt)
        for it in gaps[m]: run_item(it)
    for it in rest: run_item(it)
    if end_barrier:
        e.wait_lds_all()
        e(f"s_waitcnt vmcnt({vm_end})")
        e("s_barrier")
    return (frag0 + ncons) % nb

def red4(I, a_, b_, op):
    I(0, 1, f"v_mov_b32 v{b_}, v{a_}")
    I(0, 1, f"v_permlane32_swap_b32 v{a_}, v{b_}")
    I(0, 1, f"{op} v{a_}, v{a_}, v{b_}")
    I(0, 1, f"v_mov_b32 v{b_}, v{a_}")
    I(0, 1, f"v_permlane16_swap_b32 v{a_}, v{b_}")
    I(0, 1, f"{op} v{a_}, v{a_}, v{b_}")

def epilogue_items():
    items = []
    vWA, vRA, vSO, vl = V_KA, V_KA + 1, V_KA + 2, V_KA + 3
    RL = [V_KD, V_KD + 2, V_KD + 4, V_KD + 6]
    I = lambda eg, c, it: items.append((eg, c, it))
    I(0, 1, f"v_mbcnt_lo_u32_b32 v{vl}, -1, 0")
    I(0, 1, f"v_mbcnt_hi_u32_b32 v{vl}, -1, v{vl}")
    t0, t1 = V_T[0], V_T[1]
    I(0, 1, f"s_lshl_b32 s{S_TMP+8}, s{S_W}, 14")
    I(0, 1, f"s_lshl_b32 s{S_TMP+9}, s{S_W}, 15")
    I(0, 1, f"v_and_b32 v{t0}, 15, v{vl}")
    I(0, 1, f"v_lshrrev_b32 v{t1}, 4, v{vl}")
    I(0, 1, f"v_mul_u32_u24 v{t0}, 144, v{t0}")
    I(0, 1, f"v_lshl_add_u32 v{t0}, v{t1}, 3, v{t0}")
    I(0, 1, f"v_add_u32 v{vWA}, s{S_TMP+8}, v{t0}")
    I(0, 1, f"v_lshrrev_b32 v{t0}, 3, v{vl}")
    I(0, 1, f"v_and_b32 v{t1}, 7, v{vl}")
    I(0, 1, f"v_lshlrev_b32 v{t1}, 4, v{t1}")
    I(0, 1, f"v_mul_u32_u24 v{vRA}, 144, v{t0}")
    I(0, 1, f"v_add3_u32 v{vRA}, v{vRA}, v{t1}, s{S_TMP+8}")
    I(0, 1, f"v_lshl_add_u32 v{vSO}, v{t0}, 9, v{t1}")
    I(0, 1, f"v_add_u32 v{vSO}, s{S_TMP+9}, v{vSO}")
    for i in range(8):
        I(0, 1, f"s_mov_b32 s{S_TMP+i}, {(i >> 2) * 16384 + (i & 3) * 4096}")
    for X in range(NX):
        a_, b_ = V_T[2], V_T[3]
        I(0, 1, f"v_mov_b32 v{a_}, v{V_L[X]}")
        red4(I, a_, b_, "v_add_f32")
        I(0, 2, f"v_rcp_f32 v{RL[X]}, v{a_}")
    pending_store = []
    nbuf_st = 0
    for c in range(4):
        eg = 16 * c + 18
        for Y in range(2):
            buf = nbuf_st % 3; nbuf_st += 1
            regs = [V_OA + 64 * xx + 16 * c for xx in range(2)] if Y == 0 else [V_SB[0], V_SB[0] + 16]
            for xx in range(2):
                X = 2 * Y + xx
                r0 = regs[xx]
                if Y == 1:
                    for i in range(16):
                        I(eg, 1, f"v_accvgpr_read_b32 v{r0+i}, a{A_OB + 64*xx + 16*c + i}")
                if opt.epi_pk and c >= 2:
                    for i in range(0, 16, 2):
                        I(eg, 1, f"v_pk_mul_f32 {vr(r0+i,2)}, {vr(r0+i,2)}, {vr(RL[X],2)} op_sel_hi:[1,0]")
                else:
                    for i in range(16):
                        I(eg, 1, f"v_mul_f32 v{r0+i}, v{r0+i}, v{RL[X]}")
                for k in range(8):
                    I(eg, 1, f"v_cvt_pk_bf16_f32 v{r0+k}, v{r0+2*k}, v{r0+2*k+1}")
                for d in range(4):
                    I(eg, 1, (f"ds_write_b64 v{vWA}, {vr(r0+2*d,2)} offset:{buf*4608 + xx*16*144 + 32*d}", ("w", c, Y)))
                if xx == 0:
                    for it in pending_store: I(eg, 1, it)
                    pending_store = []
            for i in range(4):
                d = regs[i >> 1] + 8 + 4 * (i & 1)
                I(eg, 1, (f"ds_read_b128 {vr(d,4)}, v{vRA} offset:{buf*4608 + i*1152}", ("r", c, Y, i)))
            for i in range(4):
                d = regs[i >> 1] + 8 + 4 * (i & 1)
                def st(c=c, Y=Y, i=i, d=d):
                    e.wait_lds(("r", c, Y, i))
                    e(f"buffer_store_dwordx4 {vr(d,4)}, v{vSO}, {sr(S_OSRD,4)}, s{S_TMP + 4*Y + i} offen offset:{c*128}{OAUX()}")
                pending_store.append(st)
    for it in pending_store: I(999, 1, it)
    return items

def stamp(i, wait=True):
    if not opt.debug_time: return
    if opt.loop_stamps:
        if i != 4: return
        i = 0
    e(f"s_memtime s[{S_T0+2*i}:{S_T0+2*i+1}]")
    e(f"s_memrealtime s[{72+2*i}:{73+2*i}]")
    if wait:
        e("s_waitcnt lgkmcnt(0)")
        e.lds_q = []

def gen():
    hdr = open("cdna_kernels/" + NAME + ".s.ref").read().split("\n")
    head = []
    for ln in hdr:
        if ln.startswith("; @launch"):
            break
        head.append(ln)
    out = head + ["; @launch grid=(256,1,1) block=(256,1,1) lds=163840",
                  '.amdgcn_target "amdgcn-amd-amdhsa--gfx950"', ".text",
                  f".globl {NAME}_kernel", ".p2align 8", f".type {NAME}_kernel,@function",
                  f"{NAME}_kernel:"]
    T = S_TMP
    e("s_cmp_ge_u32 s2, 256")
    e("s_cbranch_scc1 L_end")
    e(f"s_load_dwordx4 {sr(T,4)}, s[0:1], 0")
    e(f"s_load_dwordx4 {sr(T+4,4)}, s[0:1], 16")
    if opt.debug_time:
        e(f"s_load_dwordx2 s[64:65], s[0:1], {32 if opt.debug_dbg else 40}")
    stamp(0, wait=False)
    if opt.pairmap == 0:
        e(f"s_and_b32 s{T+8}, s2, 7")
        e(f"s_lshr_b32 s{T+9}, s2, 4")
        e(f"s_lshl_b32 s{T+9}, s{T+9}, 3")
        e(f"s_add_u32 s{T+9}, s{T+9}, s{T+8}")
        e(f"s_bfe_u32 s{T+10}, s2, 0x10003")
    else:
        e(f"s_lshr_b32 s{T+9}, s2, 1")
        e(f"s_and_b32 s{T+10}, s2, 1")
    vL, vq, vh, vx, vy, vz = V_X[0], V_X[1], V_X[2], V_X[3], V_X[4], V_X[5]
    e(f"v_lshrrev_b32 v{vx}, 6, v0")
    e(f"v_and_b32 v{vL}, 63, v0")
    e(f"v_readfirstlane_b32 s{S_W}, v{vx}")
    e(f"v_and_b32 v{vq}, 31, v{vL}")
    e(f"v_lshrrev_b32 v{vh}, 5, v{vL}")
    e(f"s_lshl_b32 s{T+11}, s{T+9}, 1")
    e(f"s_add_u32 s{T+11}, s{T+11}, s{T+10}")
    e(f"s_lshl_b32 s{T+11}, s{T+11}, 17")
    e(f"s_lshl_b32 s{T+9}, s{T+9}, 19")
    e(f"s_mov_b32 s{S_C}, 0x{f32bits(C_SCALE):08x}")
    e(f"s_mov_b32 s{S_ONES}, 0x3f803f80")
    e(f"s_mov_b32 s{S_THR}, 0x{f32bits(THR):08x}")
    e(f"s_mov_b32 s{S_16K}, 16384")
    e(f"s_mov_b32 s{S_PEND}, 0")
    e(f"s_mov_b32 s{S_FIRST}, 0")
    e(f"s_mov_b32 s{S_KOFF}, 0")
    e(f"s_mov_b32 s{S_VOFF}, 0")
    e(f"s_lshl_b32 s{S_M0K}, s{S_W}, 12")
    e(f"s_add_u32 s{S_M0V}, s{S_M0K}, 65536")
    e("s_waitcnt lgkmcnt(0)")
    for srd, ptr, off, nrec in ((S_QSRD, T, T + 11, 131072), (S_KSRD, T + 2, T + 9, 524288),
                                (S_VSRD, T + 4, T + 9, 524288), (S_OSRD, T + 6, T + 11, 131072)):
        e(f"s_add_u32 s{srd}, s{ptr}, s{off}")
        e(f"s_addc_u32 s{srd+1}, s{ptr+1}, 0")
        e(f"s_and_b32 s{srd+1}, s{srd+1}, 0xffff")
        e(f"s_mov_b32 s{srd+2}, {nrec}")
        e(f"s_mov_b32 s{srd+3}, 0x00020000")
    e(f"v_lshlrev_b32 v{vy}, 9, v{vh}")
    e(f"v_add_u32 v{vy}, s{S_M0K}, v{vy}")
    e(f"s_and_b32 s{T+8}, s{S_W}, 1")
    e(f"s_lshl_b32 s{T+8}, s{T+8}, 3")
    e(f"v_add_u32 v{vz}, s{T+8}, v{vh}")
    for t in range(4):
        e(f"v_add_u32 v{vx}, {2*t}, v{vz}")
        e(f"v_xor_b32 v{vx}, v{vx}, v{vq}")
        e(f"v_lshl_add_u32 v{V_KD+t}, v{vx}, 4, v{vy}")
    def kdma(slot):
        e(f"s_add_u32 m0, s{S_M0K}, {slot*16384}")
        for t in range(4):
            e(f"buffer_load_dwordx4 v{V_KD + t}, {sr(S_KSRD,4)}, s{S_KOFF} offen offset:{t*1024}{KVAUX()} lds")
        e(f"s_add_u32 s{S_KOFF}, s{S_KOFF}, 16384")
    def vdma(slot):
        e(f"s_add_u32 m0, s{S_M0V}, {slot*16384}")
        for t in range(4):
            e(f"buffer_load_dwordx4 v{V_VD + t}, {sr(S_VSRD,4)}, s{S_VOFF} offen offset:{t*1024}{KVAUX()} lds")
        e(f"s_add_u32 s{S_VOFF}, s{S_VOFF}, 16384")
    kdma(0)
    e(f"s_lshl_b32 s{T+8}, s{S_W}, 15")
    VQD = 128
    e(f"v_lshlrev_b32 v{V_X[6]}, 9, v{vh}")
    for t in range(8):
        e(f"v_add_u32 v{vx}, {2*t}, v{vh}")
        e(f"v_xor_b32 v{vx}, v{vx}, v{vq}")
        e(f"v_lshl_add_u32 v{VQD+t}, v{vx}, 4, v{V_X[6]}")
    e(f"s_lshl_b32 s{T+9}, s{S_W}, 14")
    e(f"s_add_u32 s{T+9}, s{T+9}, 98304")
    vm_issued = [4]
    vm_log = ["K0"] * 4
    def qdma(X):
        for n in range(8 * X, 8 * X + 8):
            if n % 4 == 0:
                e(f"s_add_u32 m0, s{T+9}, {((n >> 2) & 3) * 4096}")
                e(f"s_add_u32 s{T+11}, s{T+8}, {(n >> 2) * 4096}")
            if opt.qwin < 63: e(f"s_waitcnt vmcnt({opt.qwin})")
            e(f"buffer_load_dwordx4 v{VQD + (n & 7)}, {sr(S_QSRD,4)}, s{T+11} offen offset:{(n & 3)*1024}{QAUX()} lds")
            vm_log.append(f"Q{X}")
    def vm_wait(tag):
        last = max(i for i, t_ in enumerate(vm_log) if t_ == tag)
        e(f"s_waitcnt vmcnt({len(vm_log) - 1 - last})")
    for X in range(opt.q_first): qdma(X)
    for t in range(4):
        e(f"v_add_u32 v{vx}, {2*t}, v{vh}")
        e(f"v_lshlrev_b32 v{vx}, 1, v{vx}")
        e(f"v_xor_b32 v{vx}, v{vx}, v{vq}")
        e(f"v_lshl_add_u32 v{V_VD+t}, v{vx}, 4, v{vy}")
    e(f"v_and_b32 v{vz}, 15, v{vL}")
    e(f"v_lshrrev_b32 v{vq}, 4, v{vL}")
    e(f"v_lshlrev_b32 v{vy}, 9, v{vz}")
    for kp in range(4):
        e(f"v_add_u32 v{vx}, {4*kp}, v{vq}")
        e(f"v_xor_b32 v{vx}, v{vx}, v{vz}")
        e(f"v_lshl_add_u32 v{V_KA+kp}, v{vx}, 4, v{vy}")
    e(f"v_bfe_u32 v{vz}, v{vL}, 2, 2")
    e(f"v_lshl_add_u32 v{vy}, v{vq}, 2, v{vz}")
    e(f"v_and_b32 v{vz}, 7, v{vy}")
    e(f"v_lshlrev_b32 v{vy}, 9, v{vy}")
    e(f"v_add_u32 v{vy}, 0x10000, v{vy}")
    e(f"v_and_b32 v{vx}, 3, v{vL}")
    e(f"v_lshl_add_u32 v{vy}, v{vx}, 3, v{vy}")
    for bp in range(8):
        e(f"v_xor_b32 v{vx}, {bp}, v{vz}")
        e(f"v_lshl_add_u32 v{V_VA+bp}, v{vx}, 5, v{vy}")
    for X in range(NX):
        for i in range(4): e(f"v_mov_b32 v{V_NM4 + 4*X + i}, 0")
        e(f"v_mov_b32 v{V_L[X]}, 0")
        e(f"v_mov_b32 v{V_F[X]}, 1.0")
    e(f"s_mov_b32 s{S_FIRST}, 0xff800000")
    e(f"s_mov_b32 s{S_CP}, 0xffff0000")
    e(f"s_mov_b32 s{S_C2}, 0x{f32bits(C_SCALE):08x}")
    e(f"s_mov_b32 s{S_C2+1}, 0x{f32bits(C_SCALE):08x}")
    for i in range(128):
        e(f"v_mov_b32 v{V_OA+i}, 0")
    for i in range(128):
        e(f"v_accvgpr_write_b32 a{A_OB+i}, 0")
    VQA = 136
    for kp in range(4):
        e(f"v_add_u32 v{VQA+kp}, s{T+9}, v{V_KA+kp}")
    stamp(1)
    VQS = 160
    def ring(kslot=None, vslot=None):
        if kslot is not None:
            kdma(kslot); vm_log.extend([f"K{kslot}"] * 4)
        if vslot is not None:
            vdma(vslot); vm_log.extend([f"V{vslot}"] * 4)
    if opt.ring_mode == 0:
        later = [lambda: qdma(2), lambda: (qdma(3), ring(1)), lambda: ring(2, 0), lambda: ring(3, 1)]
    elif opt.ring_mode == 1:
        later = [lambda: qdma(2), lambda: qdma(3), lambda: ring(1), lambda: None]
    else:
        later = [lambda: qdma(2), lambda: (qdma(3), ring(1)), lambda: None, lambda: ring(2, 0)]
    for X in range(NX):
        vm_wait(f"Q{X}")
        for ks in range(8):
            e.ds(f"ds_read_b128 {vr(VQS + 4*ks, 4)}, v{VQA + (ks & 3)} offset:{(X & 1)*8192 + (ks >> 2)*256}", ("q", X, ks))
        if X < 2: e.wait_lds_all()
        later.pop(0)()
        for ks in range(8):
            e.wait_lds(("q", X, ks))
            for i in range(0, 4, 2):
                d0, d1 = VQS + 4 * ks + i, VQS + 4 * ks + i + 1
                e(f"v_lshlrev_b32 v{V_T[0]}, 16, v{d0}")
                e(f"v_and_b32 v{V_T[1]}, s{S_CP}, v{d0}")
                e(f"v_lshlrev_b32 v{V_T[2]}, 16, v{d1}")
                e(f"v_and_b32 v{V_T[3]}, s{S_CP}, v{d1}")
                e(f"v_pk_mul_f32 {vr(V_T[0],2)}, {vr(V_T[0],2)}, s[{S_C2}:{S_C2+1}]")
                e(f"v_pk_mul_f32 {vr(V_T[2],2)}, {vr(V_T[2],2)}, s[{S_C2}:{S_C2+1}]")
                e(f"v_cvt_pk_bf16_f32 v{d0}, v{V_T[0]}, v{V_T[1]}")
                e(f"v_cvt_pk_bf16_f32 v{d1}, v{V_T[2]}, v{V_T[3]}")
                e(f"v_accvgpr_write_b32 a{A_Q + 32*X + 4*ks + i}, v{d0}")
                e(f"v_accvgpr_write_b32 a{A_Q + 32*X + 4*ks + i + 1}, v{d1}")
    e("s_barrier")
    stamp(2)
    nb = opt.nbuf
    for n in range(min(nb, 16)):
        for s_, tg in kfrag_read(n % nb, 0, n, ("p", n)): e.ds(s_, tg)
    pend = [] if opt.ring_mode == 0 else (dma_group(2, 0) + dma_group(3, 1) if opt.ring_mode == 1 else dma_group(3, 1))
    nd = 4
    for f in range(13):
        e.wait_lds(("p", f))
        for X in range(NX):
            e(qk_mfma(f % nb, f, X, 0))
            if X % 2 == 0 and pend:
                pend.pop(0)(); nd += 1
        n = f + nb
        if n < 16:
            for s_, tg in kfrag_read(n % nb, 0, n, ("p", n)): e.ds(s_, tg)
    while pend:
        pend.pop(0)(); nd += 1
    e.wait_lds_all()
    e("s_waitcnt vmcnt(16)")
    e("s_barrier")
    stamp(3)
    fr0 = 13 % nb
    fr0 = body(-1, has_PV=False, frag0=fr0)
    e(f"s_mov_b32 s{S_FIRST}, 0")
    e(f"s_mov_b32 s{S_PEND}, 0")
    for X in range(NX):
        e(f"v_mov_b32 v{V_F[X]}, 1.0")
    e(f"s_mov_b32 s{S_CNT}, 7")
    stamp(4)
    e.raw(".p2align 6")
    e.label("L_loop")
    f_in = fr0
    for j in range(4):
        fr0 = body(j, frag0=fr0)
    assert fr0 == f_in
    if opt.loop_stamps:
        e("s_memtime s[88:89]")
        e("s_memrealtime s[90:91]")
        e("s_waitcnt lgkmcnt(0)")
        for k in range(1, 8):
            e(f"s_cmp_eq_u32 s{S_CNT}, {8-k}")
            e(f"s_cselect_b32 s{S_T0+2*k}, s88, s{S_T0+2*k}")
            e(f"s_cselect_b32 s{72+2*k}, s90, s{72+2*k}")
    e(f"s_sub_u32 s{S_CNT}, s{S_CNT}, 1")
    e(f"s_cmp_lg_u32 s{S_CNT}, 0")
    e("s_cbranch_scc1 L_loop")
    stamp(5)
    fr0 = body(28, dma_k=False, dma_v=True, vm_end=12, frag0=fr0)
    fr0 = body(29, dma_k=False, dma_v=False, vm_end=0, frag0=fr0)
    fr0 = body(30, has_P1=False, dma_k=False, dma_v=False, end_barrier=False, frag0=fr0)
    stamp(6)
    fr0 = body(31, has_T=False, has_P1=False, dma_k=False, dma_v=False, end_barrier=False,
               sm_next=False, frag0=fr0, tail_hook=epilogue_items)
    stamp(7)
    if opt.debug_time:
        e(f"s_lshl_b32 s66, s2, 2")
        e(f"s_add_u32 s66, s66, s{S_W}")
        e(f"s_lshl_b32 s66, s66, 6")
        e("s_mov_b32 s68, s64")
        e("s_and_b32 s69, s65, 0xffff")
        e(f"s_mov_b32 s70, {64 if opt.debug_dbg else 65536}")
        e("s_mov_b32 s71, 0x00020000")
        e("v_mov_b32 v0, 0")
        for i in range(8):
            e(f"v_mov_b32 v1, s{S_T0+2*i}")
            e(f"buffer_store_dword v1, v0, s[68:71], s66 offen offset:{4*i}")
            e(f"v_mov_b32 v2, s{72+2*i}")
            e(f"buffer_store_dword v2, v0, s[68:71], s66 offen offset:{32+4*i}")
    e.label("L_end")
    e("s_endpgm")
    for kind in ("R10", "R11", "R2"):
        for k in rare_sites[kind]:
            e.label(f"L_stub_{k}")
            e(f"s_mov_b32 s{S_SITE}, {k}")
            e(f"s_branch L_{kind}")
    def ret(kind):
        for k in rare_sites[kind]:
            e(f"s_cmp_eq_u32 s{S_SITE}, {k}")
            e(f"s_cbranch_scc1 L_back_{k}")
        e("s_endpgm")
    for sb in range(2):
        kind = f"R1{sb}"
        e.label(f"L_{kind}")
        e.nop(12)
        for X in range(NX):
            sr_ = [V_SB[sb] + 8 * X + i for i in range(8)]
            a_, b_ = V_T[2], V_T[3]
            e(f"v_max3_f32 v{a_}, v{sr_[0]}, v{sr_[1]}, v{sr_[2]}")
            e(f"v_max3_f32 v{a_}, v{a_}, v{sr_[3]}, v{sr_[4]}")
            e(f"v_max3_f32 v{a_}, v{a_}, v{sr_[5]}, v{sr_[6]}")
            e(f"v_max_f32 v{a_}, v{a_}, v{sr_[7]}")
            red4(lambda eg, c, it: e(it), a_, b_, "v_max_f32")
            e(f"v_max_f32 v{a_}, s{S_FIRST}, v{a_}")
            for i in range(8):
                e(f"v_sub_f32 v{sr_[i]}, v{sr_[i]}, v{a_}")
            for i in range(4):
                e(f"v_sub_f32 v{V_NM4 + 4*X + i}, v{V_NM4 + 4*X + i}, v{a_}")
            e(f"v_sub_f32 v{b_}, 0, v{a_}")
            e(f"v_min_f32 v{b_}, 0, v{b_}")
            e(f"v_exp_f32 v{b_}, v{b_}")
            e(f"v_mul_f32 v{V_L[X]}, v{V_L[X]}, v{b_}")
            e(f"v_mov_b32 v{V_F[X]}, v{b_}")
        e(f"s_mov_b32 s{S_PEND}, 1")
        e.nop(2)
        ret(kind)
    e.label("L_R2")
    e.nop(16)
    for i in range(128):
        e(f"v_mul_f32 v{V_OA+i}, v{V_OA+i}, v{V_F[i >> 6]}")
    for i in range(0, 128, 2):
        a_, b_ = V_T[2], V_T[3]
        e(f"v_accvgpr_read_b32 v{a_}, a{A_OB+i}")
        e(f"v_accvgpr_read_b32 v{b_}, a{A_OB+i+1}")
        e(f"v_mul_f32 v{a_}, v{a_}, v{V_F[2 + (i >> 6)]}")
        e(f"v_mul_f32 v{b_}, v{b_}, v{V_F[2 + (i >> 6)]}")
        e(f"v_accvgpr_write_b32 a{A_OB+i}, v{a_}")
        e(f"v_accvgpr_write_b32 a{A_OB+i+1}, v{b_}")
    for X in range(NX):
        e(f"v_mov_b32 v{V_F[X]}, 1.0")
    e(f"s_mov_b32 s{S_PEND}, 0")
    e.nop(2)
    ret("R2")
    out += e.lines
    out += ['.section .rodata,"a"', ".p2align 6", f".amdhsa_kernel {NAME}_kernel",
            "  .amdhsa_next_free_vgpr 512", "  .amdhsa_next_free_sgpr 96", "  .amdhsa_accum_offset 256",
            "  .amdhsa_group_segment_fixed_size 0", "  .amdhsa_kernarg_size 48",
            "  .amdhsa_user_sgpr_count 2", "  .amdhsa_user_sgpr_kernarg_segment_ptr 1",
            "  .amdhsa_system_sgpr_workgroup_id_x 1", ".end_amdhsa_kernel", ""]
    return "\n".join(out)

if __name__ == "__main__":
    outp = "cdna_kernels/" + NAME + ".s"
    for a in sys.argv[1:]:
        if a.startswith("-o="): outp = a[3:]
        else:
            k, v = a.split("=")
            setattr(opt, k, type(getattr(opt, k))(int(v)) if not isinstance(getattr(opt, k), bool) else bool(int(v)))
    txt = gen()
    open(outp, "w").write(txt)
    print("wrote", outp, "instrs", e.n_instr)
```
